```python
import torch

def _softmax(x, axis=-1):
    return torch.softmax(x, dim=axis)
def _gelu(x):
    return torch.nn.functional.gelu(x, approximate="tanh")
def _silu(x):
    return torch.nn.functional.silu(x)
def _sigmoid(x):
    return torch.sigmoid(x)
def _layernorm(x, axis=-1, eps=1e-5):
    m = x.mean(dim=axis, keepdim=True)
    v = x.var(dim=axis, keepdim=True, unbiased=False)
    return (x - m) / torch.sqrt(v + eps)
def _scatter_add(tgt, idx, src, axis=0):
    return tgt.clone().index_add_(axis, idx, src)
def _segment_sum(src, seg, n):
    out = torch.zeros((n,) + src.shape[1:], dtype=src.dtype)
    return out.index_add_(0, seg, src)
def _pad(x, pw):
    flat = tuple(v for pair in reversed(pw) for v in pair)
    return torch.nn.functional.pad(x, flat)

kernel_name = 'standalone__kv_cache_quant_int4_int2_kv_with_per_channel_or_per_token_scales__sampling'

def setup_inputs():

    _w = (lambda a: (lambda t: t.to(torch.bfloat16) if t.is_floating_point() else t)(torch.as_tensor(a)))
    B = 16
    Sq = 16
    Skv = 4096
    Hq = 32
    Hkv = 4
    Dh = 128
    bits = 2
    G = 32
    if G <= 0 or G >= Skv:
        G = max(1, Skv // 2)
    Skv = (Skv // G) * G
    ngk = Skv // G
    qmax = (1 << bits) - 1
    return {
        "q": _w((lambda *s: torch.randn(*s, dtype=torch.bfloat16) * 3.2)(B, Hq, Sq, Dh)),
        "qk": _w(torch.randint(0, qmax + 1, (B, Hkv, Skv, Dh)).to(torch.int32)),
        "qv": _w(torch.randint(0, qmax + 1, (B, Hkv, Skv, Dh)).to(torch.int32)),
        "k_scales": _w(torch.abs((lambda *s: torch.randn(*s, dtype=torch.bfloat16) * 3.2)(B, Hkv, ngk, Dh)) * 0.05 + 0.02),
        "k_zeros": _w((lambda *s: torch.randn(*s, dtype=torch.bfloat16) * 3.2)(B, Hkv, ngk, Dh) + float(qmax) / 2.0),
        "v_scales": _w(torch.abs((lambda *s: torch.randn(*s, dtype=torch.bfloat16) * 0.05)(B, Hkv, Skv, 1)) * 0.05 + 0.02),
        "v_zeros": _w((lambda *s: torch.randn(*s, dtype=torch.bfloat16) * 0.05)(B, Hkv, Skv, 1) + float(qmax) / 2.0),
    }

def reference(q, qk, qv, k_scales, k_zeros, v_scales, v_zeros):
    B, Hq, Sq, Dh = q.shape
    Hkv, Skv = qk.shape[1], qk.shape[2]
    ngk = k_scales.shape[2]
    G = Skv // ngk
    ks = (lambda x, n, axis: torch.repeat_interleave(x, n, dim=axis))(k_scales, G, axis=2)
    kz = (lambda x, n, axis: torch.repeat_interleave(x, n, dim=axis))(k_zeros, G, axis=2)
    k = ((lambda x, dt: x.to(dt))(qk, q.dtype) - kz) * ks
    v = ((lambda x, dt: x.to(dt))(qv, q.dtype) - v_zeros) * v_scales
    rep = Hq // Hkv
    if rep > 1:
        k = (lambda x, n, axis: torch.repeat_interleave(x, n, dim=axis))(k, rep, axis=1)
        v = (lambda x, n, axis: torch.repeat_interleave(x, n, dim=axis))(v, rep, axis=1)
    scale = float(Dh) ** -0.5
    logits = torch.einsum("bhqd,bhkd->bhqk", q, k) * scale
    p = _softmax(logits, axis=-1)
    o = torch.einsum("bhqk,bhkd->bhqd", p, v)
    return o
```

```python
import sys, struct
NAME = 'standalone__kv_cache_quant_int4_int2_kv_with_per_channel_or_per_token_scales__sampling'

def f32bits(x):
    return struct.unpack('<I', struct.pack('<f', x))[0]

CEXP = (128.0 ** -0.5) * 1.4426950408889634
KROW = 272
VOFF = 64 * KROW
SLOT = 0x10000
LDS_BYTES = SLOT + VOFF + 16384
ML_OFF = 16 << 20

class Gen:
    def __init__(self, opts):
        self.L = []
        self.o = opts
    def A(self, s):
        self.L.append('    ' + s)
    def lab(self, s):
        self.L.append(s + ':')
    def raw(self, s):
        self.L.append(s)

    def issue_K(self, sc, d):
        nt = self.o['ldflags']
        A = self.A
        A(f'buffer_load_dwordx2 v[{sc}:{sc+1}], v2, s[16:19], s34 offen {nt}')
        A(f'buffer_load_dwordx2 v[{sc+2}:{sc+3}], v2, s[20:23], s34 offen {nt}')
        for i in range(8):
            A(f'buffer_load_dwordx4 v[{d+4*i}:{d+4*i+3}], v1, s[8:11], s32 offen offset:{512*i} {nt}')
        A('s_add_u32 s32, s32, 0x8000')
        A('s_add_u32 s34, s34, 512')
    def issue_V(self, sc, d):
        nt = self.o['ldflags']
        A = self.A
        A(f'buffer_load_dwordx4 v[{sc}:{sc+3}], v3, s[24:27], s35 offen {nt}')
        A(f'buffer_load_dwordx4 v[{sc+4}:{sc+7}], v3, s[28:31], s35 offen {nt}')
        for i in range(8):
            A(f'buffer_load_dwordx4 v[{d+4*i}:{d+4*i+3}], v1, s[12:15], s33 offen offset:{512*i} {nt}')
        A('s_add_u32 s33, s33, 0x8000')
        A('s_add_u32 s35, s35, 128')
    def deq_K(self, sc, d):
        A = self.A
        S, N, T = 8, 16, 24
        for j in range(4):
            src = sc + (j >> 1)
            A(f'v_and_b32 v{S+j}, 0xffff0000, v{src}' if j & 1 else f'v_lshlrev_b32 v{S+j}, 16, v{src}')
        for j in range(4):
            src = sc + 2 + (j >> 1)
            A(f'v_and_b32 v{N+j}, 0xffff0000, v{src}' if j & 1 else f'v_lshlrev_b32 v{N+j}, 16, v{src}')
        for j in range(4):
            A(f'v_mul_f32_e64 v{N+j}, -v{N+j}, v{S+j}')
        for i in range(8):
            b = d + 4*i
            for j in range(4):
                A(f'v_cvt_f32_i32 v{b+j}, v{b+j}')
            for j in range(4):
                A(f'v_fma_f32 v{b+j}, v{b+j}, v{S+j}, v{N+j}')
            t = T + 2*i
            A(f'v_cvt_pk_bf16_f32 v{t}, v{b}, v{b+1}')
            A(f'v_cvt_pk_bf16_f32 v{t+1}, v{b+2}, v{b+3}')
            A(f'ds_write_b64 v4, v[{t}:{t+1}] offset:{(8*(i>>2) + (i&3))*KROW}')
    def deq_V(self, sc, d):
        A = self.A
        S, N, T = 8, 16, 24
        for i in range(8):
            src = sc + (i >> 1)
            A(f'v_and_b32 v{S+i}, 0xffff0000, v{src}' if i & 1 else f'v_lshlrev_b32 v{S+i}, 16, v{src}')
        for i in range(8):
            src = sc + 4 + (i >> 1)
            A(f'v_and_b32 v{N+i}, 0xffff0000, v{src}' if i & 1 else f'v_lshlrev_b32 v{N+i}, 16, v{src}')
        for i in range(8):
            A(f'v_mul_f32_e64 v{N+i}, -v{N+i}, v{S+i}')
        for i in range(8):
            b = d + 4*i
            for j in range(4):
                A(f'v_cvt_f32_i32 v{b+j}, v{b+j}')
            for j in range(4):
                A(f'v_fma_f32 v{b+j}, v{b+j}, v{S+i}, v{N+i}')
        for j in range(4):
            for p in range(4):
                A(f'v_cvt_pk_bf16_f32 v{T+4*j+p}, v{d+4*(2*p)+j}, v{d+4*(2*p+1)+j}')
            A(f'ds_write_b128 v5, v[{T+4*j}:{T+4*j+3}] offset:{1024*j}')
    def pbar(self):
        A = self.A
        A('v_xor_b32 v4, 0x10000, v4')
        A('v_xor_b32 v5, 0x10000, v5')
        A('s_waitcnt lgkmcnt(0)')
        A('s_barrier')

    def producer(self):
        A = self.A
        KA, KB, VA, VB = (40, 44), (76, 80), (112, 120), (152, 160)
        A('v_and_b32 v6, 31, v0')
        A('v_bfe_u32 v7, v0, 5, 1')
        A('v_lshlrev_b32 v1, 4, v6')
        A('v_lshl_add_u32 v1, v7, 12, v1')
        A('v_lshlrev_b32 v2, 3, v6')
        A('v_lshlrev_b32 v3, 4, v7')
        A('s_lshl_b32 s36, s2, 19')
        A('s_lshl_b32 s37, s2, 13')
        A('s_lshl_b32 s38, s2, 11')
        A('s_lshl_b32 s32, s3, 13')
        A('s_mov_b32 s33, s32')
        A('s_lshr_b32 s34, s3, 1')
        A('s_lshl_b32 s34, s34, 8')
        A('s_lshl_b32 s35, s3, 5')
        A('s_mov_b32 s10, 0x80000')
        A('s_mov_b32 s11, 0x20000')
        A('s_mov_b32 s14, 0x80000')
        A('s_mov_b32 s15, 0x20000')
        A('s_mov_b32 s18, 0x2000')
        A('s_mov_b32 s19, 0x20000')
        A('s_mov_b32 s22, 0x2000')
        A('s_mov_b32 s23, 0x20000')
        A('s_mov_b32 s26, 0x800')
        A('s_mov_b32 s27, 0x20000')
        A('s_mov_b32 s30, 0x800')
        A('s_mov_b32 s31, 0x20000')
        A('s_waitcnt lgkmcnt(0)')
        A('s_add_u32 s8, s42, s36')
        A('s_addc_u32 s9, s43, 0')
        A('s_add_u32 s16, s46, s37')
        A('s_addc_u32 s17, s47, 0')
        A('s_add_u32 s20, s48, s37')
        A('s_addc_u32 s21, s49, 0')
        self.issue_K(*KA)
        A('s_add_u32 s12, s44, s36')
        A('s_addc_u32 s13, s45, 0')
        A('s_add_u32 s24, s50, s38')
        A('s_addc_u32 s25, s51, 0')
        A('s_add_u32 s28, s52, s38')
        A('s_addc_u32 s29, s53, 0')
        self.issue_K(*KB)
        self.issue_V(*VA)
        A(f's_mul_i32 s39, s3, {16*KROW}')
        A(f'v_mul_u32_u24 v4, {4*KROW}, v7')
        A('v_add3_u32 v4, v4, v2, s39')
        A('v_and_b32 v5, 63, v0')
        A('v_lshlrev_b32 v5, 4, v5')
        A('s_lshl_b32 s39, s3, 12')
        A(f's_add_u32 s39, s39, {VOFF}')
        A('v_add_u32 v5, s39, v5')
        A('s_waitcnt vmcnt(20)')
        self.deq_K(*KA)
        self.issue_K(*KA)
        self.issue_V(*VB)
        self.pbar()
        A('s_mov_b32 s36, 7')
        self.lab('L_ploop')
        for (Kb, Vb) in ((KB, VA), (KA, VB)):
            A('s_waitcnt vmcnt(30)')
            self.deq_K(*Kb)
            self.issue_K(*Kb)
            A('s_waitcnt vmcnt(30)')
            self.deq_V(*Vb)
            self.issue_V(*Vb)
            self.pbar()
        A('s_sub_u32 s36, s36, 1')
        A('s_cmp_lg_u32 s36, 0')
        A('s_cbranch_scc1 L_ploop')
        A('s_waitcnt vmcnt(30)')
        self.deq_K(*KB)
        A('s_waitcnt vmcnt(20)')
        self.deq_V(*VA)
        self.pbar()
        A('s_waitcnt vmcnt(0)')
        self.deq_V(*VB)
        self.pbar()
        A('s_endpgm')

    O = 64
    Q = 128
    F = 160
    S = 224
    P = 16
    def pv(self, with_k_reads):
        A = self.A
        O, F, P = self.O, self.F, self.P
        for ks in range(4):
            for j in range(4):
                n = ks*4 + j
                A(f'ds_read_b128 v[{F+4*n}:{F+4*n+3}], v2 offset:{VOFF + ks*4096 + j*1024}')
        for r in range(64):
            A(f'v_mul_f32 v{O+r}, v5, v{O+r}')
        for ks in range(4):
            for j in range(4):
                n = ks*4 + j
                if with_k_reads:
                    A('s_waitcnt lgkmcnt(14)')
                else:
                    A(f's_waitcnt lgkmcnt({min(14, 15-n)})')
                A(f'v_mfma_f32_32x32x16_bf16 v[{O+16*j}:{O+16*j+15}], v[{F+4*n}:{F+4*n+3}], v[{P+4*ks}:{P+4*ks+3}], v[{O+16*j}:{O+16*j+15}]')
                if with_k_reads:
                    T, s = n >> 3, n & 7
                    A(f'ds_read_b128 v[{F+4*n}:{F+4*n+3}], v1 offset:{T*32*KROW + 32*s}')
    def kreads(self):
        A = self.A
        F = self.F
        for n in range(16):
            T, s = n >> 3, n & 7
            A(f'ds_read_b128 v[{F+4*n}:{F+4*n+3}], v1 offset:{T*32*KROW + 32*s}')
    def qk_softmax(self):
        A = self.A
        Q, F, S, P = self.Q, self.F, self.S, self.P
        for n in range(16):
            T, s = n >> 3, n & 7
            A(f's_waitcnt lgkmcnt({min(14, 15-n)})')
            c = '0' if s == 0 else f'v[{S+16*T}:{S+16*T+15}]'
            A(f'v_mfma_f32_32x32x16_bf16 v[{S+16*T}:{S+16*T+15}], v[{F+4*n}:{F+4*n+3}], v[{Q+4*s}:{Q+4*s+3}], {c}')
        A('v_xor_b32 v1, 0x10000, v1')
        A('v_xor_b32 v2, 0x10000, v2')
        A(f'v_max3_f32 v6, v{S}, v{S+1}, v{S+2}')
        for k in range(3, 15, 2):
            A(f'v_max3_f32 v6, v6, v{S+k}, v{S+k+1}')
        A(f'v_max_f32 v6, v6, v{S+15}')
        A('s_nop 3')
        for k in range(16, 32, 2):
            A(f'v_max3_f32 v6, v6, v{S+k}, v{S+k+1}')
        A('v_mov_b32 v7, v6')
        A('s_nop 1')
        A('v_permlane32_swap_b32 v6, v7')
        A('v_max3_f32 v6, v6, v7, v3')
        A('v_sub_f32 v7, v3, v6')
        A('v_mul_f32 v7, s20, v7')
        A('v_exp_f32 v5, v7')
        A('v_mov_b32 v3, v6')
        A('v_mul_f32 v6, s20, v6')
        A('v_mul_f32 v4, v4, v5')
        for r in range(32):
            A(f'v_fma_f32 v{S+r}, v{S+r}, s20, -v6')
        for r in range(32):
            A(f'v_exp_f32 v{S+r}, v{S+r}')
        A(f'v_add_f32 v7, v{S}, v{S+1}')
        A(f'v_add_f32 v8, v{S+2}, v{S+3}')
        for r in range(4, 32, 2):
            A(f'v_add_f32 v7, v7, v{S+r}')
            A(f'v_add_f32 v8, v8, v{S+r+1}')
        for k in range(16):
            A(f'v_cvt_pk_bf16_f32 v{P+k}, v{S+2*k}, v{S+2*k+1}')
        A('v_add_f32 v7, v7, v8')
        A('v_add_f32 v4, v4, v7')

    def consumer(self):
        A = self.A
        O, Q, F, S, P = self.O, self.Q, self.F, self.S, self.P
        A('s_sub_u32 s3, s3, 4')
        A('v_and_b32 v6, 31, v0')
        A('v_bfe_u32 v7, v0, 5, 1')
        A('v_lshlrev_b32 v8, 8, v6')
        A('v_lshl_add_u32 v8, v7, 4, v8')
        A('s_lshl_b32 s21, s3, 13')
        A('s_lshr_b32 s22, s2, 2')
        A('s_lshl_b32 s22, s22, 15')
        A('s_mov_b32 s10, 0x8000')
        A('s_mov_b32 s11, 0x20000')
        A('s_waitcnt lgkmcnt(0)')
        A('s_add_u32 s8, s40, s22')
        A('s_addc_u32 s9, s41, 0')
        for s in range(8):
            A(f'buffer_load_dwordx4 v[{Q+4*s}:{Q+4*s+3}], v8, s[8:11], s21 offen offset:{32*s}')
        A(f's_mov_b32 s20, 0x{f32bits(CEXP):08x}')
        A(f'v_mul_u32_u24 v1, {KROW}, v6')
        A('v_lshl_add_u32 v1, v7, 4, v1')
        A('v_and_b32 v2, 63, v0')
        A('v_lshlrev_b32 v2, 4, v2')
        A('v_mov_b32 v9, v2')
        A('v_mov_b32 v10, v6')
        A('v_mov_b32 v3, 0xf149f2ca')
        A('v_mov_b32 v4, 0')
        for r in range(64):
            A(f'v_mov_b32 v{O+r}, 0')
        A('s_lshl_b32 s22, s2, 16')
        A('s_add_u32 s12, s56, s22')
        A('s_addc_u32 s13, s57, 0')
        A('s_mov_b32 s14, 0x10000')
        A('s_mov_b32 s15, 0x20000')
        A('s_lshl_b32 s22, s2, 10')
        A(f's_add_u32 s22, s22, 0x{ML_OFF:x}')
        A('s_add_u32 s16, s56, s22')
        A('s_addc_u32 s17, s57, 0')
        A('s_mov_b32 s18, 0x400')
        A('s_mov_b32 s19, 0x20000')
        A('s_waitcnt vmcnt(0)')
        A('s_barrier')
        self.kreads()
        self.qk_softmax()
        A('s_mov_b32 s36, 15')
        self.lab('L_cloop')
        A('s_barrier')
        self.pv(True)
        self.qk_softmax()
        A('s_sub_u32 s36, s36, 1')
        A('s_cmp_lg_u32 s36, 0')
        A('s_cbranch_scc1 L_cloop')
        A('s_barrier')
        self.pv(False)
        A('v_mov_b32 v7, v4')
        A('s_nop 1')
        A('v_permlane32_swap_b32 v4, v7')
        A('v_add_f32 v13, v4, v7')
        A('v_mov_b32 v12, v3')
        A('v_lshlrev_b32 v10, 3, v10')
        A('s_lshl_b32 s21, s3, 8')
        st = self.o['stflags']
        A(f'buffer_store_dwordx2 v[12:13], v10, s[16:19], s21 offen {st}')
        A('s_lshl_b32 s21, s3, 14')
        A('s_nop 7')
        for j in range(4):
            for a in range(4):
                off = (j*4 + a) * 1024
                so = 's21'
                if off >= 4096:
                    if off % 4096 == 0:
                        A('s_add_u32 s21, s21, 4096')
                    off %= 4096
                A(f'buffer_store_dwordx4 v[{O+16*j+4*a}:{O+16*j+4*a+3}], v9, s[12:15], s21 offen offset:{off} {st}')
        A('s_endpgm')

    def main_kernel(self):
        A = self.A
        self.raw(f'.globl {NAME}_kernel')
        self.raw('.p2align 8')
        self.raw(f'.type {NAME}_kernel,@function')
        self.lab(f'{NAME}_kernel')
        A('s_cmp_ge_u32 s2, 256')
        A('s_cbranch_scc1 L_exit')
        A('s_load_dwordx8 s[40:47], s[0:1], 0')
        A('s_load_dwordx4 s[48:51], s[0:1], 32')
        A('s_load_dwordx2 s[52:53], s[0:1], 48')
        A('s_load_dwordx2 s[56:57], s[0:1], 72')
        A('v_lshrrev_b32 v1, 6, v0')
        A('s_nop 0')
        A('v_readfirstlane_b32 s3, v1')
        A('s_nop 3')
        A('s_cmp_ge_u32 s3, 4')
        A('s_cbranch_scc1 L_consumer')
        self.producer()
        self.lab('L_consumer')
        self.consumer()
        self.lab('L_exit')
        A('s_endpgm')

    def combine_kernel(self):
        A = self.A
        self.raw('.globl combine_kernel')
        self.raw('.p2align 8')
        self.raw('.type combine_kernel,@function')
        self.lab('combine_kernel')
        A('s_cmp_ge_u32 s2, 256')
        A('s_cbranch_scc1 L_cexit')
        A('s_load_dwordx2 s[4:5], s[0:1], 56')
        A('s_load_dwordx2 s[6:7], s[0:1], 72')
        A('v_lshrrev_b32 v1, 6, v0')
        A('v_and_b32 v2, 31, v0')
        A('v_bfe_u32 v3, v0, 5, 1')
        A('v_lshlrev_b32 v4, 4, v0')
        A('v_lshlrev_b32 v5, 3, v2')
        A('s_lshr_b32 s20, s2, 2')
        A('s_and_b32 s21, s2, 3')
        A('s_lshl_b32 s22, s20, 18')
        A('s_lshl_b32 s23, s21, 14')
        A('s_add_u32 s22, s22, s23')
        A('s_lshl_b32 s23, s20, 12')
        A('s_lshl_b32 s24, s21, 8')
        A('s_add_u32 s23, s23, s24')
        A(f's_add_u32 s23, s23, 0x{ML_OFF:x}')
        A('s_waitcnt lgkmcnt(0)')
        A('s_add_u32 s8, s6, s22')
        A('s_addc_u32 s9, s7, 0')
        A('s_mov_b32 s10, 0x40000')
        A('s_mov_b32 s11, 0x20000')
        A('s_add_u32 s12, s6, s23')
        A('s_addc_u32 s13, s7, 0')
        A('s_mov_b32 s14, 0x1000')
        A('s_mov_b32 s15, 0x20000')
        ld = self.o['cldflags']
        for s in range(4):
            A(f'buffer_load_dwordx2 v[{8+2*s}:{9+2*s}], v5, s[12:15], 0 offen offset:{1024*s} {ld}')
        A('s_mov_b32 s24, 0')
        for s in range(4):
            for j in range(4):
                r = 32 + 16*s + 4*j
                A(f'buffer_load_dwordx4 v[{r}:{r+3}], v4, s[8:11], s24 offen {ld}')
                A(f's_add_u32 s24, s24, {4096 if j < 3 else 65536 - 3*4096}')
        A('s_lshl_b32 s22, s2, 13')
        A('s_add_u32 s16, s4, s22')
        A('s_addc_u32 s17, s5, 0')
        A('s_mov_b32 s18, 0x2000')
        A('s_mov_b32 s19, 0x20000')
        A('v_lshlrev_b32 v6, 8, v2')
        A('v_lshl_add_u32 v6, v1, 6, v6')
        A('v_lshl_add_u32 v6, v3, 5, v6')
        A(f's_mov_b32 s20, 0x{f32bits(CEXP):08x}')
        A('s_waitcnt vmcnt(16)')
        A('v_max3_f32 v16, v8, v10, v12')
        A('v_max_f32 v16, v16, v14')
        for s in range(4):
            A(f'v_sub_f32 v{17+s}, v{8+2*s}, v16')
        for s in range(4):
            A(f'v_mul_f32 v{17+s}, s20, v{17+s}')
        for s in range(4):
            A(f'v_exp_f32 v{17+s}, v{17+s}')
        A('s_nop 0')
        A('v_mul_f32 v21, v17, v9')
        A('v_fmac_f32 v21, v18, v11')
        A('v_fmac_f32 v21, v19, v13')
        A('v_fmac_f32 v21, v20, v15')
        A('v_rcp_f32 v21, v21')
        A('s_nop 0')
        for s in range(4):
            A(f'v_mul_f32 v{17+s}, v{17+s}, v21')
        A('s_waitcnt vmcnt(12)')
        for k in range(16):
            A(f'v_mul_f32 v{32+k}, v17, v{32+k}')
        for s in range(1, 4):
            A(f's_waitcnt vmcnt({12-4*s})')
            for k in range(16):
                A(f'v_fmac_f32 v{32+k}, v{17+s}, v{32+16*s+k}')
        for b in range(4):
            A(f'v_cvt_pk_bf16_f32 v{24+2*b}, v{32+b}, v{36+b}')
            A(f'v_cvt_pk_bf16_f32 v{25+2*b}, v{40+b}, v{44+b}')
        A('buffer_store_dwordx4 v[24:27], v6, s[16:19], 0 offen')
        A('buffer_store_dwordx4 v[28:31], v6, s[16:19], 0 offen offset:16')
        self.lab('L_cexit')
        A('s_endpgm')

    def desc(self, name, vg, sg=102):
        r = self.raw
        r('.p2align 6')
        r(f'.amdhsa_kernel {name}')
        r(f'  .amdhsa_next_free_vgpr {vg}')
        r(f'  .amdhsa_next_free_sgpr {sg}')
        r(f'  .amdhsa_accum_offset {vg}')
        r('  .amdhsa_group_segment_fixed_size 0')
        r('  .amdhsa_kernarg_size 80')
        r('  .amdhsa_user_sgpr_count 2')
        r('  .amdhsa_user_sgpr_kernarg_segment_ptr 1')
        r('  .amdhsa_system_sgpr_workgroup_id_x 1')
        r('  .amdhsa_float_denorm_mode_32 3')
        r('.end_amdhsa_kernel')

    def build(self):
        hdr = open('cdna_kernels/' + NAME + '.s.ref').read().split('\n')
        for line in hdr:
            if line.startswith('; Override') : break
            self.raw(line)
        self.raw(f'; @launch kernel={NAME}_kernel grid=(256,1,1) block=(512,1,1) lds={LDS_BYTES}')
        self.raw('; @launch kernel=combine_kernel grid=(256,1,1) block=(256,1,1) lds=0')
        self.raw('.amdgcn_target "amdgcn-amd-amdhsa--gfx950"')
        self.raw('.text')
        self.main_kernel()
        self.combine_kernel()
        self.raw('.section .rodata,"a"')
        self.desc(NAME + '_kernel', 256, 64)
        self.desc('combine_kernel', 96, 32)
        return '\n'.join(self.L) + '\n'

if __name__ == '__main__':
    opts = dict(ldflags='nt', stflags='', cldflags='')
    out = sys.argv[1] if len(sys.argv) > 1 else 'cdna_kernels/' + NAME + '.s'
    for kv in sys.argv[2:]:
        k, v = kv.split('=', 1)
        opts[k] = v
    open(out, 'w').write(Gen(opts).build())
```

```python
import sys, struct
NAME = 'standalone__kv_cache_quant_int4_int2_kv_with_per_channel_or_per_token_scales__sampling'

def f32bits(x):
    return struct.unpack('<I', struct.pack('<f', x))[0]

CEXP = (128.0 ** -0.5) * 1.4426950408889634
KROW = 272
VOFF = 64 * KROW
WOFF = VOFF + 16384
SLOTSZ = 33824
XOFF = 2 * SLOTSZ
XML = XOFF + 65536
XST = XML + 2048
LDS_BYTES = XST + 64
ML_OFF = 8 << 20


class Gen:
    def __init__(self, opts):
        self.L = []
        self.o = opts
        self.n0 = int(opts['n0']); self.X = int(opts['X'])
        self.NP = 64 - 4*self.n0 - self.X
        assert self.NP >= 0 and self.n0 >= 3
        self.uid = 0
    def A(self, s): self.L.append('    ' + s)
    def lab(self, s): self.L.append(s + ':')
    def raw(self, s): self.L.append(s)
    def newlab(self, p):
        self.uid += 1
        return f'L_{p}_{self.uid}'

    def stamp_init(self, vr):
        if not self.o.get('stamp'): return
        A = self.A
        self.sv = vr
        A(f'v_mov_b32 v{vr}, 0')
        A('s_waitcnt lgkmcnt(0)')
        A(f'v_writelane_b32 v{vr}, s90, 0')
        A('s_mov_b32 m0, 1')
    def stamp(self):
        if not self.o.get('stamp'): return
        A = self.A
        A('s_waitcnt lgkmcnt(0)')
        A('s_memrealtime s[90:91]')
        A('s_waitcnt lgkmcnt(0)')
        A(f'v_writelane_b32 v{self.sv}, s90, m0')
        A('s_add_u32 m0, m0, 1')
    def stamp_out(self, tmp, wavebase):
        if not self.o.get('stamp'): return
        A = self.A
        A('s_waitcnt vmcnt(0)')
        self.stamp()
        A('s_mov_b32 s92, m0')
        A(f'v_writelane_b32 v{self.sv}, s92, 63')
        A('s_lshl_b32 s92, s2, 3')
        A('s_add_u32 s92, s92, s3')
        A(f's_add_u32 s92, s92, {wavebase}')
        A('s_lshl_b32 s92, s92, 8')
        A('s_add_u32 s92, s92, 0x4000000')
        A('s_add_u32 s96, s58, s92')
        A('s_addc_u32 s97, s59, 0')
        A('s_mov_b32 s98, 256')
        A('s_mov_b32 s99, 0x20000')
        A(f'v_and_b32 v{tmp}, 63, v0')
        A(f'v_lshlrev_b32 v{tmp}, 2, v{tmp}')
        A(f'buffer_store_dword v{self.sv}, v{tmp}, s[96:99], 0 offen')

    PS, PN, PT = 8, 16, 24
    KA = (32, 36)
    VA = (68, 76)
    VB = (108, 116)
    PML = (148, 150, 152)
    PB = (160, 192, 224)
    def set_tile(self, st):
        A = self.A
        A(f's_lshl_b32 s32, {st}, 15')
        A('s_add_u32 s32, s32, s36')
        A(f's_lshl_b32 s34, {st}, 9')
        A('s_add_u32 s34, s34, s37')
        A(f's_lshl_b32 s35, {st}, 7')
        A('s_add_u32 s35, s35, s38')
    def issue_K(self, sc, d):
        nt = self.o['ldflags']; A = self.A
        A(f'buffer_load_dwordx2 v[{sc}:{sc+1}], v2, s[16:19], s34 offen {nt}')
        A(f'buffer_load_dwordx2 v[{sc+2}:{sc+3}], v2, s[20:23], s34 offen {nt}')
        for i in range(8):
            A(f'buffer_load_dwordx4 v[{d+4*i}:{d+4*i+3}], v1, s[8:11], s32 offen offset:{512*i} {nt}')
    def issue_V(self, sc, d):
        nt = self.o['ldflags']; A = self.A
        A(f'buffer_load_dwordx4 v[{sc}:{sc+3}], v3, s[24:27], s35 offen {nt}')
        A(f'buffer_load_dwordx4 v[{sc+4}:{sc+7}], v3, s[28:31], s35 offen {nt}')
        for i in range(8):
            A(f'buffer_load_dwordx4 v[{d+4*i}:{d+4*i+3}], v1, s[12:15], s32 offen offset:{512*i} {nt}')
    def deq_K(self, sc, d):
        A = self.A
        S, N, T = self.PS, self.PN, self.PT
        for j in range(4):
            src = sc + (j >> 1)
            A(f'v_and_b32 v{S+j}, 0xffff0000, v{src}' if j & 1 else f'v_lshlrev_b32 v{S+j}, 16, v{src}')
        for j in range(4):
            src = sc + 2 + (j >> 1)
            A(f'v_and_b32 v{N+j}, 0xffff0000, v{src}' if j & 1 else f'v_lshlrev_b32 v{N+j}, 16, v{src}')
        for j in range(4):
            A(f'v_mul_f32_e64 v{N+j}, -v{N+j}, v{S+j}')
        for i in range(8):
            b = d + 4*i
            for j in range(4):
                A(f'v_cvt_f32_i32 v{b+j}, v{b+j}')
            for j in range(4):
                A(f'v_fma_f32 v{b+j}, v{b+j}, v{S+j}, v{N+j}')
            t = T + 2*(i & 3)
            A(f'v_cvt_pk_bf16_f32 v{t}, v{b}, v{b+1}')
            A(f'v_cvt_pk_bf16_f32 v{t+1}, v{b+2}, v{b+3}')
            A(f'ds_write_b64 v4, v[{t}:{t+1}] offset:{(8*(i>>2) + (i&3))*KROW}')
    def deq_V(self, sc, d):
        A = self.A
        S, N, T = self.PS, self.PN, self.PT
        for i in range(8):
            src = sc + (i >> 1)
            A(f'v_and_b32 v{S+i}, 0xffff0000, v{src}' if i & 1 else f'v_lshlrev_b32 v{S+i}, 16, v{src}')
        for i in range(8):
            src = sc + 4 + (i >> 1)
            A(f'v_and_b32 v{N+i}, 0xffff0000, v{src}' if i & 1 else f'v_lshlrev_b32 v{N+i}, 16, v{src}')
        for i in range(8):
            A(f'v_mul_f32_e64 v{N+i}, -v{N+i}, v{S+i}')
        for i in range(8):
            b = d + 4*i
            for j in range(4):
                A(f'v_cvt_f32_i32 v{b+j}, v{b+j}')
            for j in range(4):
                A(f'v_fma_f32 v{b+j}, v{b+j}, v{S+i}, v{N+i}')
        for j in range(4):
            t = (S, S+4, N, N+4)[j]
            for p in range(4):
                A(f'v_cvt_pk_bf16_f32 v{t+p}, v{d+4*(2*p)+j}, v{d+4*(2*p+1)+j}')
            A(f'ds_write_b128 v5, v[{t}:{t+3}] offset:{1024*j}')
    def ptoggle(self):
        A = self.A
        A('v_add_u32 v4, s39, v4')
        A('v_add_u32 v5, s39, v5')
        A('s_sub_u32 s39, 0, s39')
    def issue_partials(self):
        A = self.A
        A('v_and_b32 v26, 63, v0')
        A('v_lshlrev_b32 v24, 4, v26')
        A('v_add_u32 v25, 0x1000, v24')
        A('v_lshlrev_b32 v26, 3, v26')
        for k in range(3):
            A(f'buffer_load_dwordx2 v[{self.PML[k]}:{self.PML[k]+1}], v26, s[64:67], s{73+k} offen sc1')
            for c in range(8):
                r = self.PB[k] + 4*c
                A(f'buffer_load_dwordx4 v[{r}:{r+3}], v{24 + (c >> 2)}, s[60:63], s{70+k} offen offset:{1024*(c & 3)} sc1')
    def precombine(self):
        A = self.A
        m = self.PML
        A(f'v_max3_f32 v12, v{m[0]}, v{m[1]}, v{m[2]}')
        for k in range(3):
            A(f'v_sub_f32 v{9+k}, v{m[k]}, v12')
        for k in range(3):
            A(f'v_mul_f32 v{9+k}, s33, v{9+k}')
        for k in range(3):
            A(f'v_exp_f32 v{9+k}, v{9+k}')
        A('v_and_b32 v14, 63, v0')
        A(f'v_mul_f32 v13, v9, v{m[0]+1}')
        A(f'v_fmac_f32 v13, v10, v{m[1]+1}')
        A(f'v_fmac_f32 v13, v11, v{m[2]+1}')
        A('s_lshl_b32 s68, s3, 9')
        A(f's_add_u32 s68, s68, {XML}')
        A('v_lshl_add_u32 v15, v14, 3, s68')
        A('ds_write_b64 v15, v[12:13]')
        A('s_lshl_b32 s68, s3, 14')
        A(f's_add_u32 s68, s68, {XOFF}')
        A('v_lshl_add_u32 v15, v14, 4, s68')
        for c in range(16):
            T = 24 + 4*(c & 1)
            for k in range(3):
                p = self.PB[k] + 2*c
                tt = 16 + 4*(k & 1)
                A(f'v_lshlrev_b32 v{tt}, 16, v{p}')
                A(f'v_and_b32 v{tt+1}, 0xffff0000, v{p}')
                A(f'v_lshlrev_b32 v{tt+2}, 16, v{p+1}')
                A(f'v_and_b32 v{tt+3}, 0xffff0000, v{p+1}')
                for e in range(4):
                    if k == 0:
                        A(f'v_mul_f32 v{T+e}, v9, v{tt+e}')
                    else:
                        A(f'v_fmac_f32 v{T+e}, v{9+k}, v{tt+e}')
            A(f'ds_write_b128 v15, v[{T}:{T+3}] offset:{1024*c}')
    def poll_issue(self):
        A = self.A
        Lnp = self.newlab('np')
        A('s_mov_b32 s80, 0')
        A('s_cmp_lt_u32 s6, s81')
        A(f's_cbranch_scc1 {Lnp}')
        A('s_cmp_lg_u32 s78, 0')
        A(f's_cbranch_scc1 {Lnp}')
        A('s_atomic_add s80, s[76:77], 0 glc')
        self.lab(Lnp)
    def wait_sel(self, n0, n1):
        A = self.A
        L1, L2 = self.newlab('w'), self.newlab('w')
        A('s_cmp_eq_u32 s78, 1')
        A(f's_cbranch_scc1 {L1}')
        A(f's_waitcnt vmcnt({n0})')
        A(f's_branch {L2}')
        self.lab(L1)
        A(f's_waitcnt vmcnt({n1})')
        self.lab(L2)

    def producer(self):
        A = self.A
        KA, VA, VB = self.KA, self.VA, self.VB
        A('v_and_b32 v6, 31, v0')
        A('v_bfe_u32 v7, v0, 5, 1')
        A('v_lshlrev_b32 v1, 4, v6')
        A('v_lshl_add_u32 v1, v7, 12, v1')
        A('v_lshlrev_b32 v2, 3, v6')
        A('v_lshlrev_b32 v3, 4, v7')
        A('s_lshl_b32 s68, s4, 21')
        A('s_lshl_b32 s69, s4, 15')
        A('s_lshl_b32 s70, s4, 13')
        A('s_lshl_b32 s36, s3, 13')
        A('s_lshr_b32 s37, s3, 1')
        A('s_lshl_b32 s37, s37, 8')
        A('s_lshl_b32 s38, s3, 5')
        A(f's_mul_i32 s6, s5, {self.n0}')
        self.set_tile('s6')
        for b, n in ((8, 0x200000), (12, 0x200000), (16, 0x8000), (20, 0x8000), (24, 0x2000), (28, 0x2000)):
            A(f's_mov_b32 s{b+2}, 0x{n:x}')
            A(f's_mov_b32 s{b+3}, 0x20000')
        A('s_waitcnt lgkmcnt(0)')
        self.stamp_init(154)
        A('s_add_u32 s8, s42, s68')
        A('s_addc_u32 s9, s43, 0')
        A('s_add_u32 s16, s46, s69')
        A('s_addc_u32 s17, s47, 0')
        A('s_add_u32 s20, s48, s69')
        A('s_addc_u32 s21, s49, 0')
        self.issue_K(*KA)
        A('s_add_u32 s12, s44, s68')
        A('s_addc_u32 s13, s45, 0')
        A('s_add_u32 s24, s50, s70')
        A('s_addc_u32 s25, s51, 0')
        A('s_add_u32 s28, s52, s70')
        A('s_addc_u32 s29, s53, 0')
        self.issue_V(*VA)
        A(f's_mul_i32 s39, s3, {16*KROW}')
        A(f'v_mul_u32_u24 v4, {4*KROW}, v7')
        A('v_add3_u32 v4, v4, v2, s39')
        A('v_and_b32 v5, 63, v0')
        A('v_lshlrev_b32 v5, 4, v5')
        A('s_lshl_b32 s39, s3, 12')
        A(f's_add_u32 s39, s39, {VOFF}')
        A('v_add_u32 v5, s39, v5')
        A(f's_mov_b32 s39, {SLOTSZ}')
        A(f'v_mov_b32 v6, {WOFF}')
        A('s_lshl_b32 s68, s4, 17')
        A('s_add_u32 s60, s58, s68')
        A('s_addc_u32 s61, s59, 0')
        A('s_mov_b32 s62, 0x20000')
        A('s_mov_b32 s63, 0x20000')
        A('s_lshl_b32 s68, s4, 13')
        A(f's_add_u32 s68, s68, 0x{ML_OFF:x}')
        A('s_add_u32 s64, s58, s68')
        A('s_addc_u32 s65, s59, 0')
        A('s_mov_b32 s66, 0x2000')
        A('s_mov_b32 s67, 0x20000')
        for k in range(3):
            A(f's_add_u32 s68, s5, {k+1}')
            A('s_and_b32 s68, s68, 3')
            A(f's_lshl_b32 s{70+k}, s68, 15')
            A(f's_add_u32 s{70+k}, s{70+k}, s36')
            A(f's_lshl_b32 s{73+k}, s68, 11')
            A('s_lshl_b32 s68, s3, 9')
            A(f's_add_u32 s{73+k}, s{73+k}, s68')
        A(f's_mov_b32 s33, 0x{f32bits(CEXP):08x}')
        A('s_mov_b32 s78, 0')
        A('s_lshl_b32 s79, s3, 1')
        A('s_add_u32 s79, s79, 8')
        A(f's_mov_b32 s81, {64 - self.X}')
        A('s_cmp_eq_u32 s7, 1')
        A('s_cselect_b32 s81, s81, 0xffff')
        A('s_add_u32 s6, s6, 1')
        self.set_tile('s6')
        A('s_waitcnt vmcnt(10)')
        self.stamp()
        self.deq_K(*KA)
        self.issue_K(*KA)
        self.issue_V(*VB)
        self.ptoggle()
        A('s_waitcnt lgkmcnt(0)')
        self.stamp()
        A('s_barrier')
        self.lab('L_ploop')
        for par, Vb in ((1, VA), (0, VB)):
            A('ds_read_b32 v7, v6')
            A('s_cmp_ge_u32 s6, 64')
            A(f's_cbranch_scc1 L_plast{par}')
            A('v_subrev_u32 v6, s39, v6')
            A('s_waitcnt lgkmcnt(0)')
            A('v_readfirstlane_b32 s6, v7')
            A('s_nop 0')
            self.poll_issue()
            self.set_tile('s6')
            self.wait_sel(10, 37)
            self.deq_K(*KA)
            self.issue_K(*KA)
            self.deq_V(*Vb)
            self.issue_V(*Vb)
            self.ptoggle()
            A('s_waitcnt lgkmcnt(0)')
            Lskip, Lcomb = self.newlab('sk'), self.newlab('cb')
            A('s_cmp_lg_u32 s7, 1')
            A(f's_cbranch_scc1 {Lskip}')
            A('s_cmp_eq_u32 s78, 1')
            A(f's_cbranch_scc1 {Lcomb}')
            A('s_lshr_b32 s80, s80, s79')
            A('s_and_b32 s80, s80, 3')
            A('s_cmp_lg_u32 s80, 3')
            A(f's_cbranch_scc1 {Lskip}')
            self.issue_partials()
            A('s_mov_b32 s78, 1')
            A(f's_branch {Lskip}')
            self.lab(Lcomb)
            A('s_waitcnt vmcnt(20)')
            self.precombine()
            A('s_mov_b32 s78, 2')
            self.lab(Lskip)
            self.stamp()
            A('s_barrier')
        A('s_branch L_ploop')
        for par, Vb in ((1, VA), (0, VB)):
            self.lab(f'L_plast{par}')
            self.poll_issue()
            self.wait_sel(20, 47)
            self.deq_V(*Vb)
            if par == 1:
                A('s_branch L_ptail')
        self.lab('L_ptail')
        A('s_waitcnt lgkmcnt(0)')
        self.stamp()
        A('s_barrier')
        A('s_cmp_lg_u32 s7, 1')
        A('s_cbranch_scc1 L_pend')
        A('s_cmp_lg_u32 s78, 0')
        A('s_cbranch_scc1 L_pf_loaded')
        A(f's_mov_b32 s82, {int(self.o["spin"])}')
        self.lab('L_pf_poll')
        A('s_lshr_b32 s80, s80, s79')
        A('s_and_b32 s80, s80, 3')
        A('s_cmp_eq_u32 s80, 3')
        A('s_cbranch_scc1 L_pf_ready')
        A('s_cmp_eq_u32 s82, 0')
        A('s_cbranch_scc1 L_pf_giveup')
        A('s_sub_u32 s82, s82, 1')
        A('s_mov_b32 s80, 0')
        A('s_atomic_add s80, s[76:77], 0 glc')
        A('s_waitcnt lgkmcnt(0)')
        A('s_branch L_pf_poll')
        self.lab('L_pf_ready')
        self.issue_partials()
        A('s_mov_b32 s78, 1')
        self.lab('L_pf_loaded')
        self.stamp()
        A('s_cmp_eq_u32 s78, 2')
        A('s_cbranch_scc1 L_pf_done')
        A('s_waitcnt vmcnt(0)')
        self.stamp()
        self.precombine()
        self.lab('L_pf_done')
        A('v_mov_b32 v8, 1')
        A('s_branch L_pf_status')
        self.lab('L_pf_giveup')
        A('v_mov_b32 v8, 0')
        self.lab('L_pf_status')
        A('s_lshl_b32 s68, s3, 2')
        A(f's_add_u32 s68, s68, {XST}')
        A('v_mov_b32 v9, s68')
        A('ds_write_b32 v9, v8')
        A('s_waitcnt lgkmcnt(0)')
        A('s_barrier')
        self.lab('L_pend')
        self.stamp_out(155, 0)
        A('s_endpgm')

    O, Q, F, S, P = 64, 128, 160, 224, 16
    def kreads(self):
        F = self.F
        for n in range(16):
            T, s = n >> 3, n & 7
            self.A(f'ds_read_b128 v[{F+4*n}:{F+4*n+3}], v1 offset:{T*32*KROW + 32*s}')
    def softmax_ops(self):
        S, P = self.S, self.P
        ops = []
        a = ops.append
        a(f'v_max3_f32 v6, v{S}, v{S+1}, v{S+2}')
        for k in range(3, 15, 2):
            a(f'v_max3_f32 v6, v6, v{S+k}, v{S+k+1}')
        a(f'v_max_f32 v6, v6, v{S+15}')
        a('#T1')
        for k in range(16, 32, 2):
            a(f'v_max3_f32 v6, v6, v{S+k}, v{S+k+1}')
        a('v_mov_b32 v7, v6')
        a('s_nop 1')
        a('v_permlane32_swap_b32 v6, v7')
        a('v_max3_f32 v6, v6, v7, v3')
        a('v_sub_f32 v7, v3, v6')
        a('v_mul_f32 v7, s20, v7')
        a('v_exp_f32 v5, v7')
        a('v_mov_b32 v3, v6')
        a('v_mul_f32 v6, s20, v6')
        a('v_mul_f32 v4, v4, v5')
        for g in range(4):
            b = S + 8*g
            for r in range(8):
                a(f'v_fma_f32 v{b+r}, v{b+r}, s20, -v6')
            for r in range(8):
                a(f'v_exp_f32 v{b+r}, v{b+r}')
            if g == 0:
                a(f'v_add_f32 v7, v{b}, v{b+1}')
                a(f'v_add_f32 v8, v{b+2}, v{b+3}')
                rr = range(4, 8, 2)
            else:
                rr = range(0, 8, 2)
            for r in rr:
                a(f'v_add_f32 v7, v7, v{b+r}')
                a(f'v_add_f32 v8, v8, v{b+r+1}')
            a(f'#P{g}')
            for k in range(4):
                a(f'v_cvt_pk_bf16_f32 v{P+4*g+k}, v{b+2*k}, v{b+2*k+1}')
        a('v_add_f32 v7, v7, v8')
        a('v_add_f32 v4, v4, v7')
        return ops
    def qk_mfma(self, n):
        Q, F, S = self.Q, self.F, self.S
        T, s = n >> 3, n & 7
        c = '0' if s == 0 else f'v[{S+16*T}:{S+16*T+15}]'
        return f'v_mfma_f32_32x32x16_bf16 v[{S+16*T}:{S+16*T+15}], v[{F+4*n}:{F+4*n+3}], v[{Q+4*s}:{Q+4*s+3}], {c}'
    def pv_mfma(self, n):
        O, F, P = self.O, self.F, self.P
        ks, j = n >> 2, n & 3
        return f'v_mfma_f32_32x32x16_bf16 v[{O+16*j}:{O+16*j+15}], v[{F+4*n}:{F+4*n+3}], v[{P+4*ks}:{P+4*ks+3}], v[{O+16*j}:{O+16*j+15}]'
    def vread(self, n):
        F = self.F
        ks, j = n >> 2, n & 3
        return f'ds_read_b128 v[{F+4*n}:{F+4*n+3}], v2 offset:{VOFF + ks*4096 + j*1024}'

    def phase_begin(self):
        A = self.A
        A('ds_read_b32 v14, v10')
        A('v_add_u32 v10, s39, v10')
        if self.NP > 0:
            L = self.newlab('tk')
            A('s_cmp_lg_u32 s3, 0')
            A(f's_cbranch_scc1 {L}')
            A(f's_cmp_lt_u32 s30, {self.n0}')
            A(f's_cbranch_scc1 {L}')
            A('s_cmp_lg_u32 s31, 0')
            A(f's_cbranch_scc1 {L}')
            A('s_mov_b32 s80, 1')
            A('s_atomic_add s80, s[76:77], 0 glc')
            self.lab(L)
    def phase_end(self):
        A = self.A
        A('s_waitcnt lgkmcnt(0)')
        A('s_mov_b32 s28, s29')
        A('v_readfirstlane_b32 s29, v14')
        A('s_sub_u32 s39, 0, s39')
        L = self.newlab('te')
        A('s_cmp_lg_u32 s3, 0')
        A(f's_cbranch_scc1 {L}')
        self.ticket_write()
        self.lab(L)
    def ticket_write(self):
        A = self.A
        Lw, Ldyn, Lex = self.newlab('tw'), self.newlab('td'), self.newlab('tx')
        A(f's_cmp_ge_u32 s30, {self.n0}')
        A(f's_cbranch_scc1 {Ldyn}')
        A(f's_mul_i32 s82, s5, {self.n0}')
        A('s_add_u32 s82, s82, s30')
        A(f's_branch {Lw}')
        self.lab(Ldyn)
        if self.NP > 0:
            A('s_cmp_lg_u32 s31, 0')
            A(f's_cbranch_scc1 {Lex}')
            A('s_and_b32 s80, s80, 0xff')
            A(f's_add_u32 s82, s80, {4*self.n0}')
            A(f's_cmp_lt_u32 s80, {self.NP}')
            A(f's_cbranch_scc1 {Lw}')
            A('s_mov_b32 s31, 1')
        self.lab(Lex)
        A('s_min_u32 s82, s27, 0xff')
        A('s_add_u32 s27, s27, 1')
        self.lab(Lw)
        A('v_mov_b32 v15, s82')
        A('s_add_u32 s30, s30, 1')
        A('ds_write_b32 v10, v15')
        A('s_waitcnt lgkmcnt(0)')

    def step_full(self):
        A = self.A
        O = self.O
        self.phase_begin()
        self.kreads()
        for n in range(16):
            A('s_waitcnt lgkmcnt(14)')
            A(self.qk_mfma(n))
            A(self.vread(n))
            for r in range(4*n, 4*n+4):
                A(f'v_mul_f32 v{O+r}, v5, v{O+r}')
        A('v_add_u32 v1, s39, v1')
        ops = self.softmax_ops()
        def w(t):
            if t.startswith('#'): return 0
            if t.startswith('v_exp'): return 2
            return 1
        tot = sum(w(t) for t in ops)
        per = tot / 16.0
        idx = 0
        acc = 0.0
        since_qk = 6
        for n in range(16):
            A(f's_waitcnt lgkmcnt({min(14, 15-n)})'); since_qk += 1
            A(self.pv_mfma(n)); since_qk += 1
            if n == 15:
                A('v_add_u32 v2, s39, v2')
            target = per * (n + 1)
            while idx < len(ops) and (acc < target or n == 15):
                t = ops[idx]
                if t == '#T1':
                    if since_qk < 12:
                        A(f's_nop {12 - since_qk - 1}')
                        since_qk = 12
                    idx += 1
                    continue
                if t.startswith('#P'):
                    g = int(t[2:])
                    if n < 4*g + 3:
                        break
                    idx += 1
                    continue
                A(t); since_qk += 1
                acc += w(t)
                idx += 1
        assert idx == len(ops)
        self.phase_end()
    def step_first(self):
        A = self.A
        self.phase_begin()
        self.kreads()
        for n in range(16):
            A(f's_waitcnt lgkmcnt({min(14, 15-n)})')
            A(self.qk_mfma(n))
        A('v_add_u32 v1, s39, v1')
        A('v_add_u32 v2, s39, v2')
        cnt = 2
        for t in self.softmax_ops():
            if t == '#T1':
                if cnt < 12:
                    A(f's_nop {12 - cnt - 1}')
                continue
            if t.startswith('#'): continue
            A(t); cnt += 1
        self.phase_end()
    def step_last(self):
        A = self.A
        O = self.O
        for n in range(16):
            A(self.vread(n))
        for r in range(32):
            A(f'v_mul_f32 v{O+r}, v5, v{O+r}')
        for n in range(16):
            A(f's_waitcnt lgkmcnt({min(14, 15-n)})')
            A(self.pv_mfma(n))
            if n < 2:
                for r in range(32 + 16*n, 48 + 16*n):
                    A(f'v_mul_f32 v{O+r}, v5, v{O+r}')
    def publish(self):
        A = self.A
        O = self.O
        st = self.o['stflags']
        A('v_lshrrev_b32 v15, 1, v9')
        A(f'buffer_store_dwordx2 v[12:13], v15, s[16:19], s22 offen {st}')
        A('v_add_u32 v14, 0x1000, v9')
        for c in range(8):
            for k in range(4):
                A(f'v_cvt_pk_bf16_f32 v{32+4*c+k}, v{O+8*c+2*k}, v{O+8*c+2*k+1}')
            A(f'buffer_store_dwordx4 v[{32+4*c}:{32+4*c+3}], v{9 if c < 4 else 14}, s[12:15], s21 offen offset:{1024*(c & 3)} {st}')
        A('s_waitcnt vmcnt(0)')
    def store_out(self):
        A = self.A
        O = self.O
        A('v_and_b32 v6, 31, v0')
        A('v_bfe_u32 v7, v0, 5, 1')
        A('v_lshlrev_b32 v6, 8, v6')
        A('v_lshl_add_u32 v6, v7, 5, v6')
        for a in range(4):
            T = 32 + 8*a
            for b in range(4):
                r = 4*a + b
                A(f'v_cvt_pk_bf16_f32 v{T+2*b}, v{O+r}, v{O+16+r}')
                A(f'v_cvt_pk_bf16_f32 v{T+2*b+1}, v{O+32+r}, v{O+48+r}')
            A(f'buffer_store_dwordx4 v[{T}:{T+3}], v6, s[8:11], s23 offen offset:{64*a}')
            A(f'buffer_store_dwordx4 v[{T+4}:{T+7}], v6, s[8:11], s23 offen offset:{64*a+16}')

    def consumer(self):
        A = self.A
        O, Q, F, S, P = self.O, self.Q, self.F, self.S, self.P
        A('v_and_b32 v6, 31, v0')
        A('v_bfe_u32 v7, v0, 5, 1')
        A('v_lshlrev_b32 v8, 8, v6')
        A('v_lshl_add_u32 v8, v7, 4, v8')
        A('s_lshl_b32 s23, s3, 13')
        A('s_lshl_b32 s22, s4, 15')
        A('s_mov_b32 s10, 0x8000')
        A('s_mov_b32 s11, 0x20000')
        A('s_waitcnt lgkmcnt(0)')
        self.stamp_init(11)
        A('s_add_u32 s8, s40, s22')
        A('s_addc_u32 s9, s41, 0')
        for s in range(8):
            A(f'buffer_load_dwordx4 v[{Q+4*s}:{Q+4*s+3}], v8, s[8:11], s23 offen offset:{32*s} {self.o["qflags"]}')
        A(f's_mov_b32 s20, 0x{f32bits(CEXP):08x}')
        A(f'v_mul_u32_u24 v1, {KROW}, v6')
        A('v_lshl_add_u32 v1, v7, 4, v1')
        A('v_and_b32 v2, 63, v0')
        A('v_lshlrev_b32 v2, 4, v2')
        A('v_mov_b32 v9, v2')
        A(f'v_mov_b32 v10, {WOFF}')
        A('v_mov_b32 v3, 0xf149f2ca')
        A('v_mov_b32 v4, 0')
        for r in range(64):
            A(f'v_mov_b32 v{O+r}, 0')
        A('s_lshl_b32 s21, s4, 17')
        A('s_add_u32 s12, s58, s21')
        A('s_addc_u32 s13, s59, 0')
        A('s_mov_b32 s14, 0x20000')
        A('s_mov_b32 s15, 0x20000')
        A('s_lshl_b32 s21, s4, 13')
        A(f's_add_u32 s21, s21, 0x{ML_OFF:x}')
        A('s_add_u32 s16, s58, s21')
        A('s_addc_u32 s17, s59, 0')
        A('s_mov_b32 s18, 0x2000')
        A('s_mov_b32 s19, 0x20000')
        A('s_lshl_b32 s21, s5, 15')
        A('s_add_u32 s21, s21, s23')
        A('s_lshl_b32 s24, s3, 9')
        A('s_lshl_b32 s25, s5, 11')
        A('s_add_u32 s25, s25, s24')
        A(f's_mov_b32 s39, {SLOTSZ}')
        A('s_mov_b32 s29, 0')
        A('s_mov_b32 s30, 2')
        A(f's_mov_b32 s31, {0 if self.NP > 0 else 1}')
        A(f's_mov_b32 s27, {64 - self.X}')
        A('s_cmp_eq_u32 s7, 1')
        A('s_cselect_b32 s27, s27, 0x100')
        L = self.newlab('t0')
        A('s_cmp_lg_u32 s3, 0')
        A(f's_cbranch_scc1 {L}')
        self.ticket_write()
        self.lab(L)
        A('s_waitcnt vmcnt(0)')
        A('s_add_u32 s8, s54, s22')
        A('s_addc_u32 s9, s55, 0')
        A('s_mov_b32 s22, s25')
        self.stamp()
        A('s_barrier')
        self.stamp()
        self.step_first()
        self.lab('L_cloop')
        A('s_barrier')
        self.stamp()
        A('s_cmp_ge_u32 s28, 64')
        A('s_cbranch_scc1 L_clast')
        self.step_full()
        A('s_branch L_cloop')
        self.lab('L_clast')
        self.step_last()
        A('v_mov_b32 v7, v4')
        A('v_mov_b32 v12, v3')
        A('s_nop 0')
        A('v_permlane32_swap_b32 v4, v7')
        A('v_add_f32 v13, v4, v7')
        A('s_lshl_b32 s79, s3, 1')
        A('s_add_u32 s79, s79, 8')
        A('s_cmp_eq_u32 s7, 1')
        A('s_cbranch_scc1 L_cfin')
        A('s_nop 3')
        self.publish()
        self.stamp()
        A('s_lshl_b32 s80, 1, s79')
        A('s_atomic_add s80, s[76:77], 0 glc')
        A('s_waitcnt lgkmcnt(0)')
        A('s_add_u32 s81, s3, 16')
        A('s_lshr_b32 s81, s80, s81')
        A('s_lshr_b32 s80, s80, s79')
        A('s_and_b32 s80, s80, 3')
        A('s_and_b32 s81, s81, 1')
        A('s_lshl_b32 s81, s81, 2')
        A('s_or_b32 s80, s80, s81')
        A('s_cmp_eq_u32 s80, 6')
        A('s_cbranch_scc1 L_cmem')
        A('s_branch L_cend')
        self.lab('L_cfin')
        A('s_lshl_b32 s80, s3, 2')
        A(f's_add_u32 s80, s80, {XST}')
        A('v_mov_b32 v6, s80')
        A(f's_add_u32 s80, s24, {XML}')
        A('v_lshrrev_b32 v7, 1, v9')
        A('v_add_u32 v7, s80, v7')
        A('s_lshl_b32 s80, s3, 14')
        A(f's_add_u32 s80, s80, {XOFF}')
        A('v_add_u32 v8, s80, v9')
        A('s_barrier')
        self.stamp()
        A('ds_read_b32 v6, v6')
        A('ds_read_b64 v[14:15], v7')
        for c in range(12):
            A(f'ds_read_b128 v[{F+4*c}:{F+4*c+3}], v8 offset:{1024*c}')
        A('s_waitcnt lgkmcnt(12)')
        A('v_readfirstlane_b32 s80, v6')
        for c in range(12, 16):
            A(f'ds_read_b128 v[{F+4*c}:{F+4*c+3}], v8 offset:{1024*c}')
        A('s_cmp_eq_u32 s80, 0')
        A('s_cbranch_scc1 L_cgiveup')
        A('v_max_f32 v6, v12, v14')
        A('v_sub_f32 v7, v12, v6')
        A('v_sub_f32 v8, v14, v6')
        A('v_mul_f32 v7, s20, v7')
        A('v_mul_f32 v8, s20, v8')
        A('v_exp_f32 v7, v7')
        A('v_exp_f32 v8, v8')
        A('s_nop 0')
        A('v_mul_f32 v6, v7, v13')
        A('v_fmac_f32 v6, v8, v15')
        A('v_rcp_f32 v6, v6')
        A('s_nop 0')
        A('v_mul_f32 v7, v7, v6')
        A('v_mul_f32 v8, v8, v6')
        for r in range(64):
            A(f'v_mul_f32 v{O+r}, v7, v{O+r}')
        A('s_waitcnt lgkmcnt(0)')
        for r in range(64):
            A(f'v_fmac_f32 v{O+r}, v8, v{F+r}')
        self.store_out()
        A('s_branch L_cend')
        self.lab('L_cgiveup')
        A('s_waitcnt lgkmcnt(0)')
        self.publish()
        A('s_add_u32 s81, s3, 16')
        A('s_lshl_b32 s80, 1, s81')
        A('s_atomic_or s80, s[76:77], 0 glc')
        A('s_waitcnt lgkmcnt(0)')
        A('s_lshr_b32 s80, s80, s79')
        A('s_and_b32 s80, s80, 3')
        A('s_cmp_lg_u32 s80, 3')
        A('s_cbranch_scc1 L_cend')
        self.lab('L_cmem')
        B = (Q, F, F+32, S)
        A('v_lshrrev_b32 v15, 1, v9')
        A('v_add_u32 v14, 0x1000, v9')
        A('s_mov_b32 s80, s23')
        A('s_mov_b32 s81, s24')
        for k in range(4):
            A(f'buffer_load_dwordx2 v[{16+2*k}:{17+2*k}], v15, s[16:19], s81 offen sc1')
            for c in range(8):
                r = B[k] + 4*c
                A(f'buffer_load_dwordx4 v[{r}:{r+3}], v{9 if c < 4 else 14}, s[12:15], s80 offen offset:{1024*(c & 3)} sc1')
            A('s_add_u32 s80, s80, 0x8000')
            A('s_add_u32 s81, s81, 0x800')
        A('s_waitcnt vmcnt(0)')
        A('v_max3_f32 v6, v16, v18, v20')
        A('v_max_f32 v6, v6, v22')
        for k in range(4):
            A(f'v_sub_f32 v{24+k}, v{16+2*k}, v6')
        for k in range(4):
            A(f'v_mul_f32 v{24+k}, s20, v{24+k}')
        for k in range(4):
            A(f'v_exp_f32 v{24+k}, v{24+k}')
        A('s_nop 0')
        A('v_mul_f32 v6, v24, v17')
        A('v_fmac_f32 v6, v25, v19')
        A('v_fmac_f32 v6, v26, v21')
        A('v_fmac_f32 v6, v27, v23')
        A('v_rcp_f32 v6, v6')
        A('s_nop 0')
        for k in range(4):
            A(f'v_mul_f32 v{24+k}, v{24+k}, v6')
        for k in range(4):
            for p in range(32):
                A(f'v_lshlrev_b32 v6, 16, v{B[k]+p}')
                A(f'v_and_b32 v7, 0xffff0000, v{B[k]+p}')
                if k == 0:
                    A(f'v_mul_f32 v{O+2*p}, v24, v6')
                    A(f'v_mul_f32 v{O+2*p+1}, v24, v7')
                else:
                    A(f'v_fmac_f32 v{O+2*p}, v{24+k}, v6')
                    A(f'v_fmac_f32 v{O+2*p+1}, v{24+k}, v7')
        self.store_out()
        self.lab('L_cend')
        self.stamp()
        self.stamp_out(14, 4)
        A('s_endpgm')

    def main_kernel(self):
        A = self.A
        self.raw(f'.globl {NAME}_kernel')
        self.raw('.p2align 8')
        self.raw(f'.type {NAME}_kernel,@function')
        self.lab(f'{NAME}_kernel')
        if self.o.get('stamp'): A('s_memrealtime s[90:91]')
        A('s_cmp_ge_u32 s2, 256')
        A('s_cbranch_scc1 L_exit')
        A('s_load_dwordx16 s[40:55], s[0:1], 0')
        A('s_load_dwordx4 s[56:59], s[0:1], 64')
        A('v_lshrrev_b32 v1, 6, v0')
        A('s_lshr_b32 s4, s2, 2')
        A('v_readfirstlane_b32 s3, v1')
        A('s_and_b32 s5, s2, 3')
        A('s_bfe_u32 s6, s2, 0x20003')
        A('s_cmp_eq_u32 s5, s6')
        A('s_cselect_b32 s7, 1, 0')
        A('s_cmp_lt_u32 s3, 4')
        A('s_cbranch_scc1 L_consumer')
        A('s_sub_u32 s3, s3, 4')
        self.counter_addr_later = True
        self.producer_wrap()
        self.lab('L_consumer')
        self.consumer_wrap()
        self.lab('L_exit')
        A('s_endpgm')
    def _with_counter(self, fn):
        start = len(self.L)
        fn()
        for i in range(start, len(self.L)):
            if self.L[i].strip() == 's_waitcnt lgkmcnt(0)':
                self.L[i+1:i+1] = ['    s_lshl_b32 s76, s4, 2', '    s_add_u32 s76, s56, s76', '    s_addc_u32 s77, s57, 0']
                break
    def producer_wrap(self): self._with_counter(self.producer)
    def consumer_wrap(self): self._with_counter(self.consumer)

    def desc(self, name, vg, sg=102):
        r = self.raw
        r('.p2align 6')
        r(f'.amdhsa_kernel {name}')
        r(f'  .amdhsa_next_free_vgpr {vg}')
        r(f'  .amdhsa_next_free_sgpr {sg}')
        r(f'  .amdhsa_accum_offset {vg}')
        r('  .amdhsa_group_segment_fixed_size 0')
        r('  .amdhsa_kernarg_size 80')
        r('  .amdhsa_user_sgpr_count 2')
        r('  .amdhsa_user_sgpr_kernarg_segment_ptr 1')
        r('  .amdhsa_system_sgpr_workgroup_id_x 1')
        r('  .amdhsa_float_denorm_mode_32 3')
        r('.end_amdhsa_kernel')

    def build(self):
        hdr = open('cdna_kernels/' + NAME + '.s.ref').read().split('\n')
        for line in hdr:
            if line.startswith('; Override'): break
            self.raw(line)
        self.raw(f'; @launch grid=(256,1,1) block=(512,1,1) lds={LDS_BYTES}')
        self.raw('.amdgcn_target "amdgcn-amd-amdhsa--gfx950"')
        self.raw('.text')
        self.main_kernel()
        self.raw('.section .rodata,"a"')
        self.desc(NAME + '_kernel', 256, 102)
        return '\n'.join(self.L) + '\n'

if __name__ == '__main__':
    opts = dict(ldflags='nt', stflags='sc1', qflags='', n0='11', X='3', spin='200')
    out = sys.argv[1] if len(sys.argv) > 1 else 'cdna_kernels/' + NAME + '.s'
    for kv in sys.argv[2:]:
        k, v = kv.split('=', 1)
        opts[k] = v
    open(out, 'w').write(Gen(opts).build())
```

```python
import sys, struct
from gen3 import Gen as Gen3, NAME, f32bits, CEXP, KROW, VOFF, WOFF, SLOTSZ

LDS_BYTES = 2 * SLOTSZ
ML_OFF = 8 << 20
GU_OFF = 9 << 20
ABIT = 7
GBIT = 19

class Gen(Gen3):
    def __init__(self, opts):
        opts = dict(opts); opts['X'] = '0'
        super().__init__(opts)

    TK = (148, 149)
    def ticket_issue(self, par):
        self.A(f'v_mov_b32 v{self.TK[par]}, 1')
        self.A(f'buffer_atomic_add v{self.TK[par]}, v150, s[60:63], 0 offen sc0 sc1')

    def producer(self):
        A = self.A
        KA, VA, VB = self.KA, self.VA, self.VB
        n0, NP = self.n0, self.NP
        A('v_and_b32 v6, 31, v0')
        A('v_bfe_u32 v7, v0, 5, 1')
        A('v_lshlrev_b32 v1, 4, v6')
        A('v_lshl_add_u32 v1, v7, 12, v1')
        A('v_lshlrev_b32 v2, 3, v6')
        A('v_lshlrev_b32 v3, 4, v7')
        A('s_lshl_b32 s68, s4, 21')
        A('s_lshl_b32 s69, s4, 15')
        A('s_lshl_b32 s70, s4, 13')
        A('s_lshl_b32 s36, s3, 13')
        A('s_lshr_b32 s37, s3, 1')
        A('s_lshl_b32 s37, s37, 8')
        A('s_lshl_b32 s38, s3, 5')
        A(f's_mul_i32 s6, s5, {n0}')
        self.set_tile('s6')
        for b, n in ((8, 0x200000), (12, 0x200000), (16, 0x8000), (20, 0x8000), (24, 0x2000), (28, 0x2000)):
            A(f's_mov_b32 s{b+2}, 0x{n:x}')
            A(f's_mov_b32 s{b+3}, 0x20000')
        A('s_waitcnt lgkmcnt(0)')
        self.stamp_init(154)
        A('s_add_u32 s8, s42, s68')
        A('s_addc_u32 s9, s43, 0')
        A('s_add_u32 s16, s46, s69')
        A('s_addc_u32 s17, s47, 0')
        A('s_add_u32 s20, s48, s69')
        A('s_addc_u32 s21, s49, 0')
        self.issue_K(*KA)
        A('s_add_u32 s12, s44, s68')
        A('s_addc_u32 s13, s45, 0')
        A('s_add_u32 s24, s50, s70')
        A('s_addc_u32 s25, s51, 0')
        A('s_add_u32 s28, s52, s70')
        A('s_addc_u32 s29, s53, 0')
        self.issue_V(*VA)
        A(f's_mul_i32 s39, s3, {16*KROW}')
        A(f'v_mul_u32_u24 v4, {4*KROW}, v7')
        A('v_add3_u32 v4, v4, v2, s39')
        A('v_and_b32 v5, 63, v0')
        A('v_lshlrev_b32 v5, 4, v5')
        A('s_lshl_b32 s39, s3, 12')
        A(f's_add_u32 s39, s39, {VOFF}')
        A('v_add_u32 v5, s39, v5')
        A(f's_mov_b32 s39, {SLOTSZ}')
        A(f'v_mov_b32 v6, {WOFF}')
        A('s_mov_b32 s60, s56')
        A('s_mov_b32 s61, s57')
        A('s_mov_b32 s62, 256')
        A('s_mov_b32 s63, 0x20000')
        A('v_mov_b32 v150, 0x7fffff00')
        A('s_lshl_b32 s68, s4, 2')
        A('v_mov_b32 v152, s68')
        A('v_and_b32 v151, 0xff, v0')
        A('v_cmp_eq_u32 vcc, 0, v151')
        A('s_mov_b32 s30, 0')
        A('s_mov_b32 s31, 0')
        A('v_cndmask_b32 v152, v150, v152, vcc')
        A('v_mov_b32 v7, -1')
        A('ds_write_b32 v6, v7')
        A(f'ds_write_b32 v6, v7 offset:{SLOTSZ}')
        self.ticket_issue(0)
        A('s_add_u32 s6, s6, 1')
        self.set_tile('s6')
        A('s_waitcnt vmcnt(11)')
        self.stamp()
        self.deq_K(*KA)
        self.issue_K(*KA)
        self.issue_V(*VB)
        A('v_mov_b32 v7, s6')
        A('s_waitcnt lgkmcnt(0)')
        A('ds_write_b32 v6, v7')
        self.ptoggle4()
        A('s_waitcnt lgkmcnt(0)')
        self.stamp()
        A('s_barrier')
        self.lab('L_ploop')
        for par, Vb in ((1, VA), (0, VB)):
            A('s_cmp_ge_u32 s6, 64')
            A(f's_cbranch_scc1 L_plast{par}')
            A('s_add_u32 s30, s30, 1')
            if NP > 0:
                L1 = self.newlab('dr')
                A(f's_cmp_lt_u32 s30, {n0-2}')
                A(f's_cbranch_scc1 {L1}')
                A('v_mov_b32 v150, v152')
                self.lab(L1)
            self.ticket_issue(par)
            A('s_waitcnt vmcnt(11)')
            Lst, Lgo, Lpoll, Lhave = self.newlab('st'), self.newlab('go'), self.newlab('pl'), self.newlab('hv')
            A(f's_cmp_lt_u32 s30, {n0-1}')
            A(f's_cbranch_scc1 {Lst}')
            A('s_mov_b32 s6, 0xffff')
            A('s_cmp_lg_u32 s3, 0')
            A(f's_cbranch_scc1 {Lgo}')
            A('s_mov_b32 s6, 0xff')
            if NP > 0:
                Lw = self.newlab('tw')
                A('s_cmp_lg_u32 s31, 0')
                A(f's_cbranch_scc1 {Lw}')
                A(f'v_readfirstlane_b32 s80, v{self.TK[par ^ 1]}')
                A('s_and_b32 s80, s80, 0x7f')
                A(f's_add_u32 s81, s80, {4*n0}')
                A(f's_cmp_lt_u32 s80, {NP}')
                A('s_cselect_b32 s6, s81, 0xff')
                A(f's_cbranch_scc1 {Lw}')
                A('s_mov_b32 s31, 1')
                A('v_mov_b32 v152, 0x7fffff00')
                A('v_mov_b32 v150, 0x7fffff00')
                self.lab(Lw)
            self.wwrite()
            A(f's_branch {Lgo}')
            self.lab(Lst)
            A('s_add_u32 s6, s6, 1')
            Lns = self.newlab('ns')
            A('s_cmp_lg_u32 s3, 0')
            A(f's_cbranch_scc1 {Lgo}')
            self.wwrite()
            self.lab(Lgo)
            self.deq_K(*KA)
            A('s_cmp_lg_u32 s6, 0xffff')
            A(f's_cbranch_scc1 {Lhave}')
            self.lab(Lpoll)
            A('ds_read_b32 v7, v6')
            A('s_waitcnt lgkmcnt(0)')
            A('v_readfirstlane_b32 s80, v7')
            A('s_lshr_b32 s81, s80, 16')
            A('s_cmp_lg_u32 s81, s30')
            A(f's_cbranch_scc1 {Lpoll}')
            A('s_and_b32 s6, s80, 0xffff')
            self.lab(Lhave)
            self.set_tile('s6')
            self.issue_K(*KA)
            self.deq_V(*Vb)
            self.issue_V(*Vb)
            self.ptoggle4()
            A('s_waitcnt lgkmcnt(0)')
            self.stamp()
            A('s_barrier')
        A('s_branch L_ploop')
        for par, Vb in ((1, VA), (0, VB)):
            self.lab(f'L_plast{par}')
            A('s_waitcnt vmcnt(21)')
            self.deq_V(*Vb)
            if par == 1:
                A('s_branch L_ptail')
        self.lab('L_ptail')
        A('s_waitcnt lgkmcnt(0)')
        self.stamp()
        A('s_barrier')
        self.stamp_out(155, 0)
        A('s_endpgm')
    def wwrite(self):
        A = self.A
        A('s_lshl_b32 s80, s30, 16')
        A('s_or_b32 s80, s80, s6')
        A('v_mov_b32 v7, s80')
        A('ds_write_b32 v6, v7')
    def ptoggle4(self):
        A = self.A
        A('v_add_u32 v4, s39, v4')
        A('v_add_u32 v5, s39, v5')
        A('v_add_u32 v6, s39, v6')
        A('s_sub_u32 s39, 0, s39')

    def phase_begin(self):
        A = self.A
        A('ds_read_b32 v14, v10')
        A('v_add_u32 v10, s39, v10')
    def phase_end(self):
        A = self.A
        A('s_waitcnt lgkmcnt(0)')
        A('v_readfirstlane_b32 s28, v14')
        A('s_sub_u32 s39, 0, s39')
        A('s_and_b32 s28, s28, 0xffff')

    def pack_quarter(self, a, T):
        O = self.O
        for b in range(4):
            r = 4*a + b
            self.A(f'v_cvt_pk_bf16_f32 v{T+2*b}, v{O+r}, v{O+16+r}')
            self.A(f'v_cvt_pk_bf16_f32 v{T+2*b+1}, v{O+32+r}, v{O+48+r}')

    def consumer(self):
        A = self.A
        O, Q, F, S, P = self.O, self.Q, self.F, self.S, self.P
        st = self.o['stflags']
        A('v_and_b32 v6, 31, v0')
        A('v_bfe_u32 v7, v0, 5, 1')
        A('v_lshlrev_b32 v8, 8, v6')
        A('v_lshl_add_u32 v8, v7, 4, v8')
        A('s_lshl_b32 s23, s3, 13')
        A('s_lshl_b32 s22, s4, 15')
        A('s_mov_b32 s10, 0x8000')
        A('s_mov_b32 s11, 0x20000')
        A('s_waitcnt lgkmcnt(0)')
        self.stamp_init(11)
        A('s_add_u32 s8, s40, s22')
        A('s_addc_u32 s9, s41, 0')
        for s in range(8):
            A(f'buffer_load_dwordx4 v[{Q+4*s}:{Q+4*s+3}], v8, s[8:11], s23 offen offset:{32*s} {self.o["qflags"]}')
        A(f's_mov_b32 s20, 0x{f32bits(CEXP):08x}')
        A(f'v_mul_u32_u24 v1, {KROW}, v6')
        A('v_lshl_add_u32 v1, v7, 4, v1')
        A('v_and_b32 v2, 63, v0')
        A('v_lshlrev_b32 v2, 4, v2')
        A('v_mov_b32 v9, v2')
        A(f'v_mov_b32 v10, {WOFF}')
        A('v_mov_b32 v3, 0xf149f2ca')
        A('v_mov_b32 v4, 0')
        for r in range(64):
            A(f'v_mov_b32 v{O+r}, 0')
        A('s_lshl_b32 s21, s4, 17')
        A('s_add_u32 s12, s58, s21')
        A('s_addc_u32 s13, s59, 0')
        A('s_mov_b32 s14, 0x20000')
        A('s_mov_b32 s15, 0x20000')
        A('s_lshl_b32 s21, s4, 13')
        A(f's_add_u32 s21, s21, 0x{ML_OFF:x}')
        A('s_add_u32 s16, s58, s21')
        A('s_addc_u32 s17, s59, 0')
        A('s_mov_b32 s18, 0x2000')
        A('s_mov_b32 s19, 0x20000')
        A('s_lshl_b32 s21, s4, 10')
        A(f's_add_u32 s21, s21, 0x{GU_OFF:x}')
        A('s_add_u32 s64, s58, s21')
        A('s_addc_u32 s65, s59, 0')
        A('s_mov_b32 s66, 0x400')
        A('s_mov_b32 s67, 0x20000')
        A('s_lshl_b32 s21, s5, 15')
        A('s_add_u32 s21, s21, s23')
        A('s_lshl_b32 s24, s3, 9')
        A('s_lshl_b32 s25, s5, 11')
        A('s_add_u32 s25, s25, s24')
        A('s_lshl_b32 s26, s3, 6')
        A('s_lshl_b32 s27, s5, 8')
        A('s_add_u32 s27, s27, s26')
        A('v_mov_b32 v12, 0')
        A(f'buffer_store_dword v12, v12, s[64:67], s27 offen {st}')
        A(f's_mov_b32 s39, {SLOTSZ}')
        A('s_mul_i32 s79, s3, 3')
        A(f's_add_u32 s79, s79, {ABIT}')
        A('s_waitcnt vmcnt(0)')
        A('s_add_u32 s8, s54, s22')
        A('s_addc_u32 s9, s55, 0')
        self.stamp()
        A('s_barrier')
        self.stamp()
        self.step_first()
        self.lab('L_cloop')
        A('s_barrier')
        self.stamp()
        A('s_cmp_ge_u32 s28, 64')
        A('s_cbranch_scc1 L_clast')
        self.step_full()
        A('s_branch L_cloop')
        self.lab('L_clast')
        self.step_last()
        A('v_mov_b32 v7, v4')
        A('v_mov_b32 v12, v3')
        A('v_lshrrev_b32 v15, 1, v9')
        A('v_permlane32_swap_b32 v4, v7')
        A('v_add_f32 v13, v4, v7')
        A(f'buffer_store_dwordx2 v[12:13], v15, s[16:19], s25 offen {st}')
        A('v_add_u32 v14, 0x1000, v9')
        A('s_nop 4')
        for a in range(4):
            Ls = self.newlab('pq')
            A(f's_cmp_eq_u32 s5, {a}')
            A(f's_cbranch_scc1 {Ls}')
            self.pub_quarter(a)
            self.lab(Ls)
        A('s_waitcnt vmcnt(0)')
        self.stamp()
        A('s_lshl_b32 s80, 1, s79')
        A('s_atomic_add s80, s[76:77], 0 glc')
        for a in range(4):
            Ls = self.newlab('oq')
            A(f's_cmp_lg_u32 s5, {a}')
            A(f's_cbranch_scc1 {Ls}')
            for b in range(4):
                for j in range(4):
                    A(f'v_mov_b32 v{48+4*b+j}, v{O+16*j+4*a+b}')
            self.lab(Ls)
        A('s_lshl_b32 s82, s5, 11')
        A('s_add_u32 s82, s82, s23')
        for k in range(3):
            A(f's_add_u32 s68, s5, {k+1}')
            A('s_and_b32 s68, s68, 3')
            A(f's_lshl_b32 s{70+k}, s68, 15')
            A(f's_add_u32 s{70+k}, s{70+k}, s82')
            A(f's_lshl_b32 s{73+k}, s68, 11')
            A(f's_add_u32 s{73+k}, s{73+k}, s24')
        A('s_waitcnt lgkmcnt(0)')
        A('s_mov_b32 s83, s80')
        A('s_lshr_b32 s80, s80, s79')
        A('s_and_b32 s80, s80, 7')
        A('s_add_u32 s80, s80, 1')
        A(f's_mov_b32 s84, {int(self.o["spin"])}')
        self.lab('L_cpoll')
        A('s_cmp_eq_u32 s80, 4')
        A('s_cbranch_scc1 L_cready')
        A('s_cmp_eq_u32 s84, 0')
        A('s_cbranch_scc1 L_cgiveup')
        A('s_sub_u32 s84, s84, 1')
        if self.o.get('vpoll'):
            A('v_mov_b32 v6, 0')
            A('global_load_dword v7, v6, s[76:77] sc1')
            A('s_waitcnt vmcnt(0)')
            A('v_readfirstlane_b32 s80, v7')
        else:
            A('s_mov_b32 s80, 0')
            A('s_atomic_add s80, s[76:77], 0 glc')
            A('s_waitcnt lgkmcnt(0)')
        A('s_lshr_b32 s80, s80, s79')
        A('s_and_b32 s80, s80, 7')
        A('s_branch L_cpoll')
        self.lab('L_cready')
        self.stamp()
        for k in range(3):
            A(f'buffer_load_dwordx2 v[{16+2*k}:{17+2*k}], v15, s[16:19], s{73+k} offen sc1')
        for k in range(3):
            A(f'buffer_load_dwordx4 v[{F+8*k}:{F+8*k+3}], v9, s[12:15], s{70+k} offen sc1')
            A(f'buffer_load_dwordx4 v[{F+8*k+4}:{F+8*k+7}], v9, s[12:15], s{70+k} offen offset:1024 sc1')
        self.out_addr()
        A('s_waitcnt vmcnt(6)')
        A('v_max3_f32 v6, v16, v18, v20')
        A('v_max_f32 v6, v6, v12')
        for k in range(3):
            A(f'v_sub_f32 v{24+k}, v{16+2*k}, v6')
        A('v_sub_f32 v27, v12, v6')
        for k in range(4):
            A(f'v_mul_f32 v{24+k}, s20, v{24+k}')
        for k in range(4):
            A(f'v_exp_f32 v{24+k}, v{24+k}')
        A('s_nop 0')
        A('v_mul_f32 v6, v24, v17')
        A('v_fmac_f32 v6, v25, v19')
        A('v_fmac_f32 v6, v26, v21')
        A('v_fmac_f32 v6, v27, v13')
        A('v_rcp_f32 v6, v6')
        A('s_nop 0')
        for k in range(4):
            A(f'v_mul_f32 v{24+k}, v{24+k}, v6')
        for e in range(16):
            A(f'v_mul_f32 v{48+e}, v27, v{48+e}')
        for k in range(3):
            A(f's_waitcnt vmcnt({4-2*k})')
            self.acc_piece(F+8*k, 24+k, False)
        self.stamp()
        self.store_quarter('s5')
        A('s_lshr_b32 s80, s83, s79')
        A('s_and_b32 s80, s80, 7')
        A(f's_add_u32 s81, s3, {GBIT}')
        A('s_lshr_b32 s81, s83, s81')
        A('s_and_b32 s81, s81, 1')
        A('s_lshl_b32 s81, s81, 3')
        A('s_or_b32 s80, s80, s81')
        A('s_cmp_lg_u32 s80, 11')
        A('s_cbranch_scc1 L_cend')
        A('v_mov_b32 v6, 0')
        for k in range(4):
            A(f'buffer_load_dword v{16+k}, v6, s[64:67], s26 offen offset:{256*k} sc1')
        A('s_waitcnt vmcnt(0)')
        A('s_mov_b32 s85, 0')
        for k in range(4):
            A(f'v_readfirstlane_b32 s80, v{16+k}')
            A('s_and_b32 s80, s80, 1')
            A(f's_lshl_b32 s80, s80, {k}')
            A('s_or_b32 s85, s85, s80')
        A('s_branch L_cmem')
        self.lab('L_cgiveup')
        for a in range(4):
            Ls = self.newlab('gq')
            A(f's_cmp_lg_u32 s5, {a}')
            A(f's_cbranch_scc1 {Ls}')
            self.pub_quarter(a)
            self.lab(Ls)
        A('v_mov_b32 v6, 0')
        A('v_mov_b32 v7, 1')
        A(f'buffer_store_dword v7, v6, s[64:67], s27 offen {st}')
        A('s_waitcnt vmcnt(0)')
        A(f's_add_u32 s81, s3, {GBIT}')
        A('s_lshl_b32 s80, 1, s81')
        A('s_atomic_or s80, s[76:77], 0 glc')
        A('s_waitcnt lgkmcnt(0)')
        A('s_lshr_b32 s80, s80, s79')
        A('s_and_b32 s80, s80, 7')
        A('s_cmp_lg_u32 s80, 4')
        A('s_cbranch_scc1 L_cend')
        A('s_lshl_b32 s85, 1, s5')
        self.lab('L_cmem')
        A('s_cmp_eq_u32 s85, 0')
        A('s_cbranch_scc1 L_cend')
        A('s_ff1_i32_b32 s86, s85')
        A('s_lshl_b32 s80, 1, s86')
        A('s_andn2_b32 s85, s85, s80')
        A('s_and_b32 s86, s86, 3')
        A('s_lshl_b32 s80, s86, 11')
        A('s_add_u32 s80, s80, s23')
        A('s_mov_b32 s81, s24')
        for k in range(4):
            A(f'buffer_load_dwordx2 v[{16+2*k}:{17+2*k}], v15, s[16:19], s81 offen sc1')
            A(f'buffer_load_dwordx4 v[{F+8*k}:{F+8*k+3}], v9, s[12:15], s80 offen sc1')
            A(f'buffer_load_dwordx4 v[{F+8*k+4}:{F+8*k+7}], v9, s[12:15], s80 offen offset:1024 sc1')
            A('s_add_u32 s80, s80, 0x8000')
            A('s_add_u32 s81, s81, 0x800')
        self.out_addr()
        A('s_waitcnt vmcnt(0)')
        A('v_max3_f32 v6, v16, v18, v20')
        A('v_max_f32 v6, v6, v22')
        for k in range(4):
            A(f'v_sub_f32 v{24+k}, v{16+2*k}, v6')
        for k in range(4):
            A(f'v_mul_f32 v{24+k}, s20, v{24+k}')
        for k in range(4):
            A(f'v_exp_f32 v{24+k}, v{24+k}')
        A('s_nop 0')
        A('v_mul_f32 v6, v24, v17')
        A('v_fmac_f32 v6, v25, v19')
        A('v_fmac_f32 v6, v26, v21')
        A('v_fmac_f32 v6, v27, v23')
        A('v_rcp_f32 v6, v6')
        A('s_nop 0')
        for k in range(4):
            A(f'v_mul_f32 v{24+k}, v{24+k}, v6')
        for k in range(4):
            self.acc_piece(F+8*k, 24+k, k == 0)
        self.store_quarter('s86')
        A('s_branch L_cmem')
        self.lab('L_cend')
        self.stamp()
        self.stamp_out(14, 4)
        A('s_endpgm')
    def pub_quarter(self, a):
        st = self.o['stflags']
        T = 32 + 8*(a & 1) if False else self.F + 8*a
        self.pack_quarter(a, T)
        vo = 9 if a < 2 else 14
        off = (a & 1) * 2048
        self.A(f'buffer_store_dwordx4 v[{T}:{T+3}], v{vo}, s[12:15], s21 offen offset:{off} {st}')
        self.A(f'buffer_store_dwordx4 v[{T+4}:{T+7}], v{vo}, s[12:15], s21 offen offset:{off+1024} {st}')
    def acc_piece(self, src, w, first):
        A = self.A
        for p in range(8):
            A(f'v_lshlrev_b32 v6, 16, v{src+p}')
            A(f'v_and_b32 v7, 0xffff0000, v{src+p}')
            op = 'v_mul_f32' if first else 'v_fmac_f32'
            A(f'{op} v{48+2*p}, v{w}, v6')
            A(f'{op} v{48+2*p+1}, v{w}, v7')
    def out_addr(self):
        A = self.A
        A('v_and_b32 v28, 31, v0')
        A('v_bfe_u32 v29, v0, 5, 1')
        A('v_lshlrev_b32 v28, 8, v28')
        A('v_lshl_add_u32 v28, v29, 5, v28')
    def store_quarter(self, sa):
        A = self.A
        for p in range(8):
            A(f'v_cvt_pk_bf16_f32 v{32+p}, v{48+2*p}, v{48+2*p+1}')
        A(f's_lshl_b32 s80, {sa}, 6')
        A('s_add_u32 s80, s80, s23')
        A('buffer_store_dwordx4 v[32:35], v28, s[8:11], s80 offen')
        A('buffer_store_dwordx4 v[36:39], v28, s[8:11], s80 offen offset:16')

    def build(self):
        hdr = open('cdna_kernels/' + NAME + '.s.ref').read().split('\n')
        for line in hdr:
            if line.startswith('; Override'): break
            self.raw(line)
        self.raw(f'; @launch grid=(256,1,1) block=(512,1,1) lds={LDS_BYTES}')
        self.raw('.amdgcn_target "amdgcn-amd-amdhsa--gfx950"')
        self.raw('.text')
        self.main_kernel()
        self.raw('.section .rodata,"a"')
        self.desc(NAME + '_kernel', 256, 102)
        return '\n'.join(self.L) + '\n'

if __name__ == '__main__':
    opts = dict(ldflags='nt', stflags='sc1', qflags='', n0='11', spin='300')
    out = sys.argv[1] if len(sys.argv) > 1 else 'cdna_kernels/' + NAME + '.s'
    for kv in sys.argv[2:]:
        k, v = kv.split('=', 1)
        opts[k] = v
    open(out, 'w').write(Gen(opts).build())
```

```python
import sys, struct
from gen4 import Gen as Gen4, NAME, f32bits, CEXP, KROW, VOFF, WOFF, SLOTSZ, LDS_BYTES, ML_OFF

SY_OFF = 9 << 20

class Gen(Gen4):
    def producer(self):
        A = self.A
        KA, VA, VB = self.KA, self.VA, self.VB
        n0, NP = self.n0, self.NP
        A('v_and_b32 v6, 31, v0')
        A('v_bfe_u32 v7, v0, 5, 1')
        A('v_lshlrev_b32 v1, 4, v6')
        A('v_lshl_add_u32 v1, v7, 12, v1')
        A('v_lshlrev_b32 v2, 3, v6')
        A('v_lshlrev_b32 v3, 4, v7')
        A('s_lshl_b32 s68, s4, 21')
        A('s_lshl_b32 s69, s4, 15')
        A('s_lshl_b32 s70, s4, 13')
        A('s_lshl_b32 s36, s3, 13')
        A('s_lshr_b32 s37, s3, 1')
        A('s_lshl_b32 s37, s37, 8')
        A('s_lshl_b32 s38, s3, 5')
        A(f's_mul_i32 s6, s5, {n0}')
        self.set_tile('s6')
        for b, n in ((8, 0x200000), (12, 0x200000), (16, 0x8000), (20, 0x8000), (24, 0x2000), (28, 0x2000)):
            A(f's_mov_b32 s{b+2}, 0x{n:x}')
            A(f's_mov_b32 s{b+3}, 0x20000')
        A('s_waitcnt lgkmcnt(0)')
        self.stamp_init(154)
        A('s_add_u32 s8, s42, s68')
        A('s_addc_u32 s9, s43, 0')
        A('s_add_u32 s16, s46, s69')
        A('s_addc_u32 s17, s47, 0')
        A('s_add_u32 s20, s48, s69')
        A('s_addc_u32 s21, s49, 0')
        self.issue_K(*KA)
        A('s_add_u32 s12, s44, s68')
        A('s_addc_u32 s13, s45, 0')
        A('s_add_u32 s24, s50, s70')
        A('s_addc_u32 s25, s51, 0')
        A('s_add_u32 s28, s52, s70')
        A('s_addc_u32 s29, s53, 0')
        self.issue_V(*VA)
        A(f's_mul_i32 s39, s3, {16*KROW}')
        A(f'v_mul_u32_u24 v4, {4*KROW}, v7')
        A('v_add3_u32 v4, v4, v2, s39')
        A('v_and_b32 v5, 63, v0')
        A('v_lshlrev_b32 v5, 4, v5')
        A('s_lshl_b32 s39, s3, 12')
        A(f's_add_u32 s39, s39, {VOFF}')
        A('v_add_u32 v5, s39, v5')
        A(f's_mov_b32 s39, {SLOTSZ}')
        A(f'v_mov_b32 v6, {WOFF}')
        A('s_lshl_b32 s68, s4, 10')
        A(f's_add_u32 s68, s68, 0x{SY_OFF:x}')
        A('s_add_u32 s76, s58, s68')
        A('s_addc_u32 s77, s59, 0')
        A('s_mov_b32 s84, 0')
        A(f's_mov_b32 s85, {0 if NP > 0 else 1}')
        A(f's_mov_b32 s86, {n0-2}')
        A('s_cmp_eq_u32 s3, 0')
        A('s_cselect_b32 s86, s86, 0x7fff')
        A('v_mov_b32 v7, -1')
        A('ds_write_b32 v6, v7')
        A(f'ds_write_b32 v6, v7 offset:{SLOTSZ}')
        A('s_add_u32 s6, s6, 1')
        self.set_tile('s6')
        A('s_waitcnt vmcnt(10)')
        self.stamp()
        self.deq_K(*KA)
        self.issue_K(*KA)
        self.issue_V(*VB)
        A('v_mov_b32 v7, s6')
        A('s_waitcnt lgkmcnt(0)')
        A('ds_write_b32 v6, v7')
        self.ptoggle4()
        A('s_waitcnt lgkmcnt(0)')
        self.stamp()
        A('s_barrier')
        self.lab('L_ploop')
        for par, Vb in ((1, VA), (0, VB)):
            A('s_cmp_ge_u32 s6, 64')
            A(f's_cbranch_scc1 L_plast{par}')
            A('s_add_u32 s84, s84, 1')
            A('s_waitcnt vmcnt(10)')
            Lst, Lgo, Lpoll, Lhave = self.newlab('st'), self.newlab('go'), self.newlab('pl'), self.newlab('hv')
            A(f's_cmp_lt_u32 s84, {n0-1}')
            A(f's_cbranch_scc1 {Lst}')
            A('s_mov_b32 s6, 0xffff')
            A('s_cmp_lg_u32 s3, 0')
            A(f's_cbranch_scc1 {Lgo}')
            A('s_mov_b32 s6, 0xff')
            if NP > 0:
                Lw = self.newlab('tw')
                A('s_cmp_lg_u32 s85, 0')
                A(f's_cbranch_scc1 {Lw}')
                A('s_waitcnt lgkmcnt(0)')
                A(f's_add_u32 s81, s80, {4*n0}')
                A(f's_cmp_lt_u32 s80, {NP}')
                A('s_cselect_b32 s6, s81, 0xff')
                A('s_cselect_b32 s85, 0, 1')
                self.lab(Lw)
            self.wwrite()
            A(f's_branch {Lgo}')
            self.lab(Lst)
            A('s_add_u32 s6, s6, 1')
            A('s_cmp_lg_u32 s3, 0')
            A(f's_cbranch_scc1 {Lgo}')
            self.wwrite()
            self.lab(Lgo)
            self.deq_K(*KA)
            A('s_cmp_lg_u32 s6, 0xffff')
            A(f's_cbranch_scc1 {Lhave}')
            self.lab(Lpoll)
            A('ds_read_b32 v7, v6')
            A('s_waitcnt lgkmcnt(0)')
            A('v_readfirstlane_b32 s80, v7')
            A('s_lshr_b32 s81, s80, 16')
            A('s_cmp_lg_u32 s81, s84')
            A(f's_cbranch_scc1 {Lpoll}')
            A('s_and_b32 s6, s80, 0xffff')
            self.lab(Lhave)
            self.set_tile('s6')
            self.issue_K(*KA)
            self.deq_V(*Vb)
            self.issue_V(*Vb)
            self.ptoggle4()
            A('s_waitcnt lgkmcnt(0)')
            self.stamp()
            if NP > 0:
                Ld = self.newlab('dr')
                A('s_cmp_lt_u32 s84, s86')
                A(f's_cbranch_scc1 {Ld}')
                A('s_cmp_lg_u32 s85, 0')
                A(f's_cbranch_scc1 {Ld}')
                A('s_mov_b32 s80, 1')
                A('s_atomic_add s80, s[76:77], 0 glc')
                self.lab(Ld)
            A('s_barrier')
        A('s_branch L_ploop')
        for par, Vb in ((1, VA), (0, VB)):
            self.lab(f'L_plast{par}')
            A('s_waitcnt vmcnt(20)')
            self.deq_V(*Vb)
            if par == 1:
                A('s_branch L_ptail')
        self.lab('L_ptail')
        A('s_waitcnt lgkmcnt(0)')
        self.stamp()
        A('s_barrier')
        self.stamp_out(155, 0)
        A('s_endpgm')
    def wwrite(self):
        A = self.A
        A('s_lshl_b32 s81, s84, 16')
        A('s_or_b32 s81, s81, s6')
        A('v_mov_b32 v7, s81')
        A('ds_write_b32 v6, v7')

    def phase_end(self):
        A = self.A
        A('s_waitcnt lgkmcnt(0)')
        A('v_readfirstlane_b32 s28, v14')
        A('s_sub_u32 s39, 0, s39')
        A('s_and_b32 s28, s28, 0xffff')
        L = self.newlab('el')
        A('s_cmp_eq_u32 s30, 3')
        A(f's_cbranch_scc1 {L}')
        A('s_call_b64 s[88:89], L_elect')
        self.lab(L)
    def elect_sub(self):
        A = self.A
        n0 = self.n0
        self.lab('L_elect')
        A('s_add_u32 s31, s31, 1')
        A('s_cmp_eq_u32 s30, 0')
        A('s_cbranch_scc1 L_el_nold')
        A('s_waitcnt vmcnt(0)')
        A('v_readfirstlane_b32 s80, v32')
        A('s_mov_b32 s30, 0')
        A('s_bitcmp1_b32 s80, 8')
        A('s_cselect_b32 s30, 3, 0')
        A('s_cbranch_scc1 L_el_ret')
        self.lab('L_el_nold')
        A(f's_cmp_ge_u32 s31, {n0-3}')
        A('s_cbranch_scc1 L_el_vote')
        A('s_cmp_lt_u32 s31, s29')
        A('s_cbranch_scc1 L_el_ret')
        A('v_mov_b32 v33, 0')
        A('global_load_dword v32, v33, s[76:77] sc1')
        A('s_mov_b32 s30, 1')
        A('s_branch L_el_ret')
        self.lab('L_el_vote')
        A('s_mov_b32 s80, 1')
        self.lab('L_el_try')
        A('s_atomic_add s80, s[76:77], 0 glc')
        A('s_waitcnt lgkmcnt(0)')
        A('s_cmp_eq_u32 s80, 0')
        A('s_cbranch_scc1 L_el_init')
        A('s_bitcmp1_b32 s80, 8')
        A('s_mov_b32 s80, 0')
        A('s_cbranch_scc0 L_el_try')
        A('s_mov_b32 s30, 3')
        A('s_branch L_el_ret')
        self.lab('L_el_init')
        A('v_mov_b32 v32, 0')
        A('v_mov_b32 v33, 0')
        A('v_mov_b32 v34, 0')
        A('v_mov_b32 v35, 0')
        A('buffer_store_dwordx4 v[32:35], v9, s[64:67], 0 offen sc1')
        A('s_waitcnt vmcnt(0)')
        A('s_movk_i32 s80, 0x100')
        A('s_atomic_add s80, s[76:77], 0')
        A('s_mov_b32 s30, 3')
        self.lab('L_el_ret')
        A('s_setpc_b64 s[88:89]')

    def consumer(self):
        A = self.A
        O, Q, F, S, P = self.O, self.Q, self.F, self.S, self.P
        st = self.o['stflags']
        A('v_and_b32 v6, 31, v0')
        A('v_bfe_u32 v7, v0, 5, 1')
        A('v_lshlrev_b32 v8, 8, v6')
        A('v_lshl_add_u32 v8, v7, 4, v8')
        A('s_lshl_b32 s23, s3, 13')
        A('s_lshl_b32 s22, s4, 15')
        A('s_mov_b32 s10, 0x8000')
        A('s_mov_b32 s11, 0x20000')
        A('s_waitcnt lgkmcnt(0)')
        self.stamp_init(11)
        A('s_add_u32 s8, s40, s22')
        A('s_addc_u32 s9, s41, 0')
        for s in range(8):
            A(f'buffer_load_dwordx4 v[{Q+4*s}:{Q+4*s+3}], v8, s[8:11], s23 offen offset:{32*s} {self.o["qflags"]}')
        A(f's_mov_b32 s20, 0x{f32bits(CEXP):08x}')
        A(f'v_mul_u32_u24 v1, {KROW}, v6')
        A('v_lshl_add_u32 v1, v7, 4, v1')
        A('v_and_b32 v2, 63, v0')
        A('v_lshlrev_b32 v2, 4, v2')
        A('v_mov_b32 v9, v2')
        A(f'v_mov_b32 v10, {WOFF}')
        A('v_mov_b32 v3, 0xf149f2ca')
        A('v_mov_b32 v4, 0')
        for r in range(64):
            A(f'v_mov_b32 v{O+r}, 0')
        A('s_lshl_b32 s21, s4, 17')
        A('s_add_u32 s12, s58, s21')
        A('s_addc_u32 s13, s59, 0')
        A('s_mov_b32 s14, 0x20000')
        A('s_mov_b32 s15, 0x20000')
        A('s_lshl_b32 s21, s4, 13')
        A(f's_add_u32 s21, s21, 0x{ML_OFF:x}')
        A('s_add_u32 s16, s58, s21')
        A('s_addc_u32 s17, s59, 0')
        A('s_mov_b32 s18, 0x2000')
        A('s_mov_b32 s19, 0x20000')
        A('s_lshl_b32 s21, s4, 10')
        A(f's_add_u32 s21, s21, 0x{SY_OFF:x}')
        A('s_add_u32 s64, s58, s21')
        A('s_addc_u32 s65, s59, 0')
        A('s_mov_b32 s66, 0x400')
        A('s_mov_b32 s67, 0x20000')
        A('s_lshl_b32 s21, s3, 7')
        A('s_add_u32 s21, s21, 128')
        A('s_add_u32 s78, s64, s21')
        A('s_addc_u32 s79, s65, 0')
        A('s_lshl_b32 s21, s5, 15')
        A('s_add_u32 s21, s21, s23')
        A('s_lshl_b32 s24, s3, 9')
        A('s_lshl_b32 s25, s5, 11')
        A('s_add_u32 s25, s25, s24')
        A(f's_mov_b32 s39, {SLOTSZ}')
        A('s_cmp_eq_u32 s3, 0')
        A('s_cselect_b32 s30, 0, 3')
        A('s_mov_b32 s31, 0')
        A('s_add_u32 s29, s5, 1')
        Le = self.newlab('e0')
        A('s_and_b32 s80, s2, 3')
        A('s_or_b32 s80, s80, s3')
        A('s_cmp_lg_u32 s80, 0')
        A(f's_cbranch_scc1 {Le}')
        A('s_call_b64 s[88:89], L_el_vote')
        self.lab(Le)
        A('s_waitcnt vmcnt(0)')
        A('s_add_u32 s8, s54, s22')
        A('s_addc_u32 s9, s55, 0')
        self.stamp()
        A('s_barrier')
        self.stamp()
        self.step_first()
        self.lab('L_cloop')
        A('s_barrier')
        self.stamp()
        A('s_cmp_ge_u32 s28, 64')
        A('s_cbranch_scc1 L_clast')
        self.step_full()
        A('s_branch L_cloop')
        self.elect_sub()
        self.lab('L_clast')
        self.step_last()
        A('v_mov_b32 v7, v4')
        A('v_mov_b32 v12, v3')
        A('v_lshrrev_b32 v15, 1, v9')
        A('v_permlane32_swap_b32 v4, v7')
        A('v_add_f32 v13, v4, v7')
        A(f'buffer_store_dwordx2 v[12:13], v15, s[16:19], s25 offen {st}')
        A('v_add_u32 v14, 0x1000, v9')
        A('s_nop 4')
        for a in range(4):
            Ls = self.newlab('pq')
            A(f's_cmp_eq_u32 s5, {a}')
            A(f's_cbranch_scc1 {Ls}')
            self.pub_quarter(a)
            self.lab(Ls)
        for a in range(4):
            Ls = self.newlab('oq')
            A(f's_cmp_lg_u32 s5, {a}')
            A(f's_cbranch_scc1 {Ls}')
            for b in range(4):
                for j in range(4):
                    A(f'v_mov_b32 v{48+4*b+j}, v{O+16*j+4*a+b}')
            self.lab(Ls)
        A('s_lshl_b32 s82, s5, 11')
        A('s_add_u32 s82, s82, s23')
        for k in range(3):
            A(f's_add_u32 s68, s5, {k+1}')
            A('s_and_b32 s68, s68, 3')
            A(f's_lshl_b32 s{70+k}, s68, 15')
            A(f's_add_u32 s{70+k}, s{70+k}, s82')
            A(f's_lshl_b32 s{73+k}, s68, 11')
            A(f's_add_u32 s{73+k}, s{73+k}, s24')
        self.out_addr()
        A('s_mov_b32 s83, 1')
        A('s_waitcnt vmcnt(0)')
        self.stamp()
        A('s_atomic_add s83, s[78:79], 0 glc')
        A(f's_mov_b32 s84, {int(self.o["spin"])}')
        A('s_waitcnt lgkmcnt(0)')
        A('s_and_b32 s80, s83, 7')
        A('s_add_u32 s80, s80, 1')
        self.lab('L_cpoll')
        A('s_cmp_eq_u32 s80, 4')
        A('s_cbranch_scc1 L_cready')
        A('s_cmp_eq_u32 s84, 0')
        A('s_cbranch_scc1 L_cgiveup')
        A('s_sub_u32 s84, s84, 1')
        A('s_mov_b32 s80, 0')
        A('s_atomic_add s80, s[78:79], 0 glc')
        A('s_waitcnt lgkmcnt(0)')
        A('s_and_b32 s80, s80, 7')
        A('s_branch L_cpoll')
        self.lab('L_cready')
        self.stamp()
        for k in range(3):
            A(f'buffer_load_dwordx2 v[{16+2*k}:{17+2*k}], v15, s[16:19], s{73+k} offen sc1')
        for k in range(3):
            A(f'buffer_load_dwordx4 v[{F+8*k}:{F+8*k+3}], v9, s[12:15], s{70+k} offen sc1')
            A(f'buffer_load_dwordx4 v[{F+8*k+4}:{F+8*k+7}], v9, s[12:15], s{70+k} offen offset:1024 sc1')
        A('s_waitcnt vmcnt(6)')
        A('v_max3_f32 v6, v16, v18, v20')
        A('v_max_f32 v6, v6, v12')
        for k in range(3):
            A(f'v_sub_f32 v{24+k}, v{16+2*k}, v6')
        A('v_sub_f32 v27, v12, v6')
        for k in range(4):
            A(f'v_mul_f32 v{24+k}, s20, v{24+k}')
        for k in range(4):
            A(f'v_exp_f32 v{24+k}, v{24+k}')
        A('s_nop 0')
        A('v_mul_f32 v6, v24, v17')
        A('v_fmac_f32 v6, v25, v19')
        A('v_fmac_f32 v6, v26, v21')
        A('v_fmac_f32 v6, v27, v13')
        A('v_rcp_f32 v6, v6')
        A('s_nop 0')
        for k in range(4):
            A(f'v_mul_f32 v{24+k}, v{24+k}, v6')
        for e in range(16):
            A(f'v_mul_f32 v{48+e}, v27, v{48+e}')
        for k in range(3):
            A(f's_waitcnt vmcnt({4-2*k})')
            self.acc_piece(F+8*k, 24+k, False)
        self.stamp()
        self.store_quarter('s5')
        A('s_and_b32 s80, s83, 7')
        A('s_cmp_lg_u32 s80, 3')
        A('s_cbranch_scc1 L_cend')
        A('s_bfe_u32 s85, s83, 0x40004')
        A('s_branch L_cmem')
        self.lab('L_cgiveup')
        for a in range(4):
            Ls = self.newlab('gq')
            A(f's_cmp_lg_u32 s5, {a}')
            A(f's_cbranch_scc1 {Ls}')
            self.pub_quarter(a)
            self.lab(Ls)
        A('s_waitcnt vmcnt(0)')
        A('s_lshl_b32 s80, 16, s5')
        A('s_atomic_or s80, s[78:79], 0 glc')
        A('s_waitcnt lgkmcnt(0)')
        A('s_and_b32 s80, s80, 7')
        A('s_cmp_lg_u32 s80, 4')
        A('s_cbranch_scc1 L_cend')
        A('s_lshl_b32 s85, 1, s5')
        self.lab('L_cmem')
        A('s_cmp_eq_u32 s85, 0')
        A('s_cbranch_scc1 L_cend')
        A('s_ff1_i32_b32 s86, s85')
        A('s_lshl_b32 s80, 1, s86')
        A('s_andn2_b32 s85, s85, s80')
        A('s_and_b32 s86, s86, 3')
        A('s_lshl_b32 s80, s86, 11')
        A('s_add_u32 s80, s80, s23')
        A('s_mov_b32 s81, s24')
        for k in range(4):
            A(f'buffer_load_dwordx2 v[{16+2*k}:{17+2*k}], v15, s[16:19], s81 offen sc1')
            A(f'buffer_load_dwordx4 v[{F+8*k}:{F+8*k+3}], v9, s[12:15], s80 offen sc1')
            A(f'buffer_load_dwordx4 v[{F+8*k+4}:{F+8*k+7}], v9, s[12:15], s80 offen offset:1024 sc1')
            A('s_add_u32 s80, s80, 0x8000')
            A('s_add_u32 s81, s81, 0x800')
        A('s_waitcnt vmcnt(0)')
        A('v_max3_f32 v6, v16, v18, v20')
        A('v_max_f32 v6, v6, v22')
        for k in range(4):
            A(f'v_sub_f32 v{24+k}, v{16+2*k}, v6')
        for k in range(4):
            A(f'v_mul_f32 v{24+k}, s20, v{24+k}')
        for k in range(4):
            A(f'v_exp_f32 v{24+k}, v{24+k}')
        A('s_nop 0')
        A('v_mul_f32 v6, v24, v17')
        A('v_fmac_f32 v6, v25, v19')
        A('v_fmac_f32 v6, v26, v21')
        A('v_fmac_f32 v6, v27, v23')
        A('v_rcp_f32 v6, v6')
        A('s_nop 0')
        for k in range(4):
            A(f'v_mul_f32 v{24+k}, v{24+k}, v6')
        for k in range(4):
            self.acc_piece(F+8*k, 24+k, k == 0)
        self.store_quarter('s86')
        A('s_branch L_cmem')
        self.lab('L_cend')
        self.stamp()
        self.stamp_out(14, 4)
        A('s_endpgm')
    def producer_wrap(self): self.producer()

if __name__ == '__main__':
    opts = dict(ldflags='nt', stflags='sc1', qflags='', n0='11', spin='300')
    out = sys.argv[1] if len(sys.argv) > 1 else 'cdna_kernels/' + NAME + '.s'
    for kv in sys.argv[2:]:
        k, v = kv.split('=', 1)
        opts[k] = v
    open(out, 'w').write(Gen(opts).build())
```

```python
import sys, struct
NAME = 'standalone__kv_cache_quant_int4_int2_kv_with_per_channel_or_per_token_scales__sampling'

def f32bits(x):
    return struct.unpack('<I', struct.pack('<f', x))[0]

CEXP = (128.0 ** -0.5) * 1.4426950408889634
KROW = 272
VOFF = 64 * KROW
WOFF = VOFF + 16384
SLOTSZ = 33824
LDS_BYTES = 2 * SLOTSZ
ML_OFF = 8 << 20
SY_OFF = 9 << 20
NEG = 0xf149f2ca

class Gen:
    def __init__(self, opts):
        self.L = []
        self.o = opts
        self.n0 = int(opts['n0'])
        self.dk = int(opts['dk'])
        self.NPB = 256 - 16*self.n0
        self.TH = int(opts['th'])
        self.sent = int(opts['sent'])
        assert self.NPB >= 0 and self.n0 >= 6
        self.uid = 0
    def A(self, s): self.L.append('    ' + s)
    def lab(self, s): self.L.append(s + ':')
    def raw(self, s): self.L.append(s)
    def newlab(self, p):
        self.uid += 1
        return f'L_{p}_{self.uid}'

    def stamp_init(self, vr):
        if not self.o.get('stamp'): return
        A = self.A
        self.sv = vr
        A(f'v_mov_b32 v{vr}, 0')
        A('s_waitcnt lgkmcnt(0)')
        A(f'v_writelane_b32 v{vr}, s90, 0')
        A('s_mov_b32 m0, 1')
    def stamp(self):
        if not self.o.get('stamp'): return
        A = self.A
        A('s_waitcnt lgkmcnt(0)')
        A('s_memrealtime s[90:91]')
        A('s_waitcnt lgkmcnt(0)')
        A(f'v_writelane_b32 v{self.sv}, s90, m0')
        A('s_add_u32 m0, m0, 1')
    def barrier(self, pre=False, post=False):
        A = self.A
        on = self.o.get('stamp')
        if on and pre:
            A('s_memrealtime s[92:93]')
        A('s_barrier')
        if on and post:
            A('s_memrealtime s[92:93]')
        if on and (pre or post):
            A('s_waitcnt lgkmcnt(0)')
            A(f'v_writelane_b32 v{self.sv}, s92, m0')
            A('s_add_u32 m0, m0, 1')
    def stamp_out(self, tmp, wavebase):
        if not self.o.get('stamp'): return
        A = self.A
        A('s_waitcnt vmcnt(0)')
        self.stamp()
        A('s_mov_b32 s92, m0')
        A(f'v_writelane_b32 v{self.sv}, s92, 63')
        A('s_lshl_b32 s92, s4, 2')
        A('s_add_u32 s92, s92, s5')
        A('s_lshl_b32 s92, s92, 3')
        A('s_add_u32 s92, s92, s3')
        A(f's_add_u32 s92, s92, {wavebase}')
        A('s_lshl_b32 s92, s92, 8')
        A('s_add_u32 s92, s92, 0x4000000')
        A('s_add_u32 s96, s58, s92')
        A('s_addc_u32 s97, s59, 0')
        A('s_mov_b32 s98, 256')
        A('s_mov_b32 s99, 0x20000')
        A(f'v_and_b32 v{tmp}, 63, v0')
        A(f'v_lshlrev_b32 v{tmp}, 2, v{tmp}')
        A(f'buffer_store_dword v{self.sv}, v{tmp}, s[96:99], 0 offen')

    PS, PN, PT = 8, 16, 24
    KA, VA, VB, KB = (32, 36), (68, 76), (108, 116), (148, 152)
    def blk(self, st):
        A = self.A
        A(f's_and_b32 s38, {st}, 0xff')
        A('s_add_u32 s38, s38, s3')
        A(f's_lshr_b32 s37, {st}, 8')
        A('s_cmp_lt_u32 s3, s37')
        A('s_cselect_b32 s38, s38, 0x1ff')
    def set_K(self):
        A = self.A
        A('s_lshl_b32 s32, s38, 13')
        A('s_lshr_b32 s34, s38, 1')
        A('s_lshl_b32 s34, s34, 8')
    def set_V(self):
        A = self.A
        A('s_lshl_b32 s33, s38, 13')
        A('s_lshl_b32 s35, s38, 5')
    def issue_K(self, sc, d):
        nt = self.o['ldflags']; A = self.A
        A(f'buffer_load_dwordx2 v[{sc}:{sc+1}], v2, s[16:19], s34 offen {nt}')
        A(f'buffer_load_dwordx2 v[{sc+2}:{sc+3}], v2, s[20:23], s34 offen {nt}')
        for i in range(8):
            A(f'buffer_load_dwordx4 v[{d+4*i}:{d+4*i+3}], v1, s[8:11], s32 offen offset:{512*i} {nt}')
    def issue_V(self, sc, d):
        nt = self.o['ldflags']; A = self.A
        A(f'buffer_load_dwordx4 v[{sc}:{sc+3}], v3, s[24:27], s35 offen {nt}')
        A(f'buffer_load_dwordx4 v[{sc+4}:{sc+7}], v3, s[28:31], s35 offen {nt}')
        for i in range(8):
            A(f'buffer_load_dwordx4 v[{d+4*i}:{d+4*i+3}], v1, s[12:15], s33 offen offset:{512*i} {nt}')
    def deq_K(self, sc, d):
        A = self.A
        S, N, T = self.PS, self.PN, self.PT
        for j in range(4):
            src = sc + (j >> 1)
            A(f'v_and_b32 v{S+j}, 0xffff0000, v{src}' if j & 1 else f'v_lshlrev_b32 v{S+j}, 16, v{src}')
        for j in range(4):
            src = sc + 2 + (j >> 1)
            A(f'v_and_b32 v{N+j}, 0xffff0000, v{src}' if j & 1 else f'v_lshlrev_b32 v{N+j}, 16, v{src}')
        for j in range(4):
            A(f'v_mul_f32_e64 v{N+j}, -v{N+j}, v{S+j}')
        for i in range(8):
            b = d + 4*i
            for j in range(4):
                A(f'v_cvt_f32_i32 v{b+j}, v{b+j}')
            for j in range(4):
                A(f'v_fma_f32 v{b+j}, v{b+j}, v{S+j}, v{N+j}')
            t = T + 2*(i & 3)
            A(f'v_cvt_pk_bf16_f32 v{t}, v{b}, v{b+1}')
            A(f'v_cvt_pk_bf16_f32 v{t+1}, v{b+2}, v{b+3}')
            A(f'ds_write_b64 v4, v[{t}:{t+1}] offset:{(8*(i>>2) + (i&3))*KROW}')
    def deq_V(self, sc, d):
        A = self.A
        S, N = self.PS, self.PN
        for i in range(8):
            src = sc + (i >> 1)
            A(f'v_and_b32 v{S+i}, 0xffff0000, v{src}' if i & 1 else f'v_lshlrev_b32 v{S+i}, 16, v{src}')
        for i in range(8):
            src = sc + 4 + (i >> 1)
            A(f'v_and_b32 v{N+i}, 0xffff0000, v{src}' if i & 1 else f'v_lshlrev_b32 v{N+i}, 16, v{src}')
        for i in range(8):
            A(f'v_mul_f32_e64 v{N+i}, -v{N+i}, v{S+i}')
        for i in range(8):
            b = d + 4*i
            for j in range(4):
                A(f'v_cvt_f32_i32 v{b+j}, v{b+j}')
            for j in range(4):
                A(f'v_fma_f32 v{b+j}, v{b+j}, v{S+i}, v{N+i}')
        for j in range(4):
            t = (S, S+4, N, N+4)[j]
            for p in range(4):
                A(f'v_cvt_pk_bf16_f32 v{t+p}, v{d+4*(2*p)+j}, v{d+4*(2*p+1)+j}')
            A(f'ds_write_b128 v5, v[{t}:{t+3}] offset:{1024*j}')
    def ptoggle(self):
        A = self.A
        A('v_add_u32 v4, s39, v4')
        A('v_add_u32 v5, s39, v5')
        A('v_add_u32 v6, s39, v6')
        A('s_sub_u32 s39, 0, s39')
    def wwrite(self):
        A = self.A
        A('s_lshl_b32 s81, s84, 16')
        A('s_or_b32 s81, s81, s87')
        A('v_mov_b32 v7, s81')
        A('ds_write_b32 v6, v7')

    def producer(self):
        A = self.A
        KA, KB, VA, VB = self.KA, self.KB, self.VA, self.VB
        n0, NPB, dk = self.n0, self.NPB, self.dk
        A('v_and_b32 v6, 31, v0')
        A('v_bfe_u32 v7, v0, 5, 1')
        A('v_lshlrev_b32 v1, 4, v6')
        A('v_lshl_add_u32 v1, v7, 12, v1')
        A('v_lshlrev_b32 v2, 3, v6')
        A('v_lshlrev_b32 v3, 4, v7')
        A('s_lshl_b32 s68, s4, 21')
        A('s_lshl_b32 s69, s4, 15')
        A('s_lshl_b32 s70, s4, 13')
        A(f's_mul_i32 s87, s5, {4*n0}')
        A('s_add_u32 s38, s87, s3')
        A('s_add_u32 s87, s87, 0x400')
        self.set_K()
        self.set_V()
        for b, n in ((8, 0x200000), (12, 0x200000), (16, 0x8000), (20, 0x8000), (24, 0x2000), (28, 0x2000)):
            A(f's_mov_b32 s{b+2}, 0x{n:x}')
            A(f's_mov_b32 s{b+3}, 0x20000')
        A('s_waitcnt lgkmcnt(0)')
        self.stamp_init(190)
        A('s_add_u32 s8, s42, s68')
        A('s_addc_u32 s9, s43, 0')
        A('s_add_u32 s16, s46, s69')
        A('s_addc_u32 s17, s47, 0')
        A('s_add_u32 s20, s48, s69')
        A('s_addc_u32 s21, s49, 0')
        self.issue_K(*KA)
        A('s_add_u32 s12, s44, s68')
        A('s_addc_u32 s13, s45, 0')
        A('s_add_u32 s24, s50, s70')
        A('s_addc_u32 s25, s51, 0')
        A('s_add_u32 s28, s52, s70')
        A('s_addc_u32 s29, s53, 0')
        if dk == 2:
            A('s_add_u32 s87, s87, 4')
            A('s_add_u32 s38, s38, 4')
            self.set_K()
            self.issue_K(*KB)
        self.issue_V(*VA)
        A(f's_mul_i32 s39, s3, {16*KROW}')
        A(f'v_mul_u32_u24 v4, {4*KROW}, v7')
        A('v_add3_u32 v4, v4, v2, s39')
        A('v_and_b32 v5, 63, v0')
        A('v_lshlrev_b32 v5, 4, v5')
        A('s_lshl_b32 s39, s3, 12')
        A(f's_add_u32 s39, s39, {VOFF}')
        A('v_add_u32 v5, s39, v5')
        A(f's_mov_b32 s39, {SLOTSZ}')
        A(f'v_mov_b32 v6, {WOFF}')
        A('s_lshl_b32 s68, s4, 10')
        A(f's_add_u32 s68, s68, 0x{SY_OFF:x}')
        A('s_add_u32 s76, s58, s68')
        A('s_addc_u32 s77, s59, 0')
        A('s_mov_b32 s84, 0')
        A(f's_mov_b32 s85, {0 if NPB > 0 else 1}')
        A(f's_mov_b32 s86, {n0-1-dk}')
        A('s_cmp_eq_u32 s3, 0')
        A('s_cselect_b32 s86, s86, 0x7fff')
        A('s_mov_b32 s82, 4')
        A('v_mov_b32 v7, -1')
        A('ds_write_b32 v6, v7')
        A(f'ds_write_b32 v6, v7 offset:{SLOTSZ}')
        if dk == 2:
            self.set_V()
            A('s_mov_b32 s7, s87')
        A('s_add_u32 s87, s87, 4')
        A('s_add_u32 s38, s38, 4')
        self.set_K()
        if dk == 1:
            self.set_V()
            A('s_mov_b32 s7, s87')
        A(f's_waitcnt vmcnt({10*dk})')
        self.stamp()
        self.deq_K(*KA)
        self.issue_K(*KA)
        self.issue_V(*VB)
        A('v_mov_b32 v7, s87')
        A('s_waitcnt lgkmcnt(0)')
        A('ds_write_b32 v6, v7')
        self.ptoggle()
        A('s_waitcnt lgkmcnt(0)')
        self.barrier(pre=True)
        self.lab('L_ploop')
        for par, Kb, Vb in ((1, KB if dk == 2 else KA, VA), (0, KA, VB)):
            A('s_mov_b32 s6, s7')
            if dk == 2:
                A('s_mov_b32 s7, s87')
            A('s_cmp_lt_u32 s6, 0x100')
            A(f's_cbranch_scc1 L_plast{par}')
            A('s_add_u32 s84, s84, 1')
            A(f's_waitcnt vmcnt({30 if dk == 2 else 10})')
            Lst, Lgo, Lpoll, Lhave = self.newlab('st'), self.newlab('go'), self.newlab('pl'), self.newlab('hv')
            A(f's_cmp_lt_u32 s84, {n0-dk}')
            A(f's_cbranch_scc1 {Lst}')
            A('s_mov_b32 s87, 0xffff')
            A('s_cmp_lg_u32 s3, 0')
            A(f's_cbranch_scc1 {Lgo}')
            A('s_mov_b32 s87, 0')
            if NPB > 0:
                Lw = self.newlab('tw')
                A('s_cmp_lg_u32 s85, 0')
                A(f's_cbranch_scc1 {Lw}')
                A('s_waitcnt lgkmcnt(0)')
                A('s_mov_b32 s85, 1')
                A(f's_cmp_ge_u32 s80, {NPB}')
                A(f's_cbranch_scc1 {Lw}')
                A('s_mov_b32 s85, 0')
                A(f's_sub_u32 s81, {NPB}, s80')
                A('s_min_u32 s81, s81, s82')
                A('s_lshl_b32 s81, s81, 8')
                A(f's_add_u32 s87, s80, {16*n0}')
                A('s_or_b32 s87, s87, s81')
                A(f's_cmp_lt_u32 s80, {max(0, NPB - self.TH)}')
                A('s_cselect_b32 s82, 4, 2')
                self.lab(Lw)
            self.wwrite()
            A(f's_branch {Lgo}')
            self.lab(Lst)
            A('s_add_u32 s87, s87, 4')
            A('s_cmp_lg_u32 s3, 0')
            A(f's_cbranch_scc1 {Lgo}')
            self.wwrite()
            self.lab(Lgo)
            self.deq_K(*Kb)
            A('s_cmp_lg_u32 s87, 0xffff')
            A(f's_cbranch_scc1 {Lhave}')
            self.lab(Lpoll)
            A('ds_read_b32 v7, v6')
            A('s_waitcnt lgkmcnt(0)')
            A('v_readfirstlane_b32 s80, v7')
            A('s_lshr_b32 s81, s80, 16')
            A('s_cmp_lg_u32 s81, s84')
            A(f's_cbranch_scc1 {Lpoll}')
            A('s_and_b32 s87, s80, 0xffff')
            self.lab(Lhave)
            self.blk('s87')
            self.set_K()
            if dk == 1:
                self.set_V()
                A('s_mov_b32 s7, s87')
            self.issue_K(*Kb)
            if dk == 2:
                self.blk('s7')
                self.set_V()
                A('s_waitcnt vmcnt(30)')
            self.deq_V(*Vb)
            self.issue_V(*Vb)
            self.ptoggle()
            A('s_waitcnt lgkmcnt(0)')
            if NPB > 0:
                Ld = self.newlab('dr')
                A('s_cmp_lt_u32 s84, s86')
                A(f's_cbranch_scc1 {Ld}')
                A('s_cmp_lg_u32 s85, 0')
                A(f's_cbranch_scc1 {Ld}')
                A('s_mov_b32 s80, s82')
                A('s_atomic_add s80, s[76:77], 0 glc')
                self.lab(Ld)
            self.barrier(pre=True)
        A('s_branch L_ploop')
        for par, Vb in ((1, VA), (0, VB)):
            self.lab(f'L_plast{par}')
            A('s_waitcnt vmcnt(20)')
            self.deq_V(*Vb)
            if par == 1:
                A('s_branch L_ptail')
        self.lab('L_ptail')
        A('s_waitcnt lgkmcnt(0)')
        self.barrier(pre=True)
        self.stamp_out(191, 0)
        A('s_endpgm')

    O, Q, F, S, P = 64, 128, 160, 224, 16
    def kreads(self):
        F = self.F
        for n in range(16):
            T, s = n >> 3, n & 7
            self.A(f'ds_read_b128 v[{F+4*n}:{F+4*n+3}], v1 offset:{T*32*KROW + 32*s}')
    def softmax_ops(self):
        S, P = self.S, self.P
        ops = []
        a = ops.append
        a(f'v_max3_f32 v6, v{S}, v{S+1}, v{S+2}')
        for k in range(3, 15, 2):
            a(f'v_max3_f32 v6, v6, v{S+k}, v{S+k+1}')
        a(f'v_max_f32 v6, v6, v{S+15}')
        a('#T1')
        for k in range(16, 32, 2):
            a(f'v_max3_f32 v6, v6, v{S+k}, v{S+k+1}')
        a('v_mov_b32 v7, v6')
        a('s_nop 1')
        a('v_permlane32_swap_b32 v6, v7')
        a('v_max3_f32 v6, v6, v7, v3')
        a('v_sub_f32 v7, v3, v6')
        a('v_mul_f32 v7, s20, v7')
        a('v_exp_f32 v5, v7')
        a('v_mov_b32 v3, v6')
        a('v_mul_f32 v6, s20, v6')
        a('v_mul_f32 v4, v4, v5')
        for g in range(4):
            b = S + 8*g
            for r in range(8):
                a(f'v_fma_f32 v{b+r}, v{b+r}, s20, -v6')
            for r in range(8):
                a(f'v_exp_f32 v{b+r}, v{b+r}')
            if g == 0:
                a(f'v_add_f32 v7, v{b}, v{b+1}')
                a(f'v_add_f32 v8, v{b+2}, v{b+3}')
                rr = range(4, 8, 2)
            else:
                rr = range(0, 8, 2)
            for r in rr:
                a(f'v_add_f32 v7, v7, v{b+r}')
                a(f'v_add_f32 v8, v8, v{b+r+1}')
            a(f'#P{g}')
            for k in range(4):
                a(f'v_cvt_pk_bf16_f32 v{P+4*g+k}, v{b+2*k}, v{b+2*k+1}')
        a('v_add_f32 v7, v7, v8')
        a('v_add_f32 v4, v4, v7')
        return ops
    def mask_half(self):
        A = self.A
        L = self.newlab('mk')
        A('s_cmp_ge_u32 s28, 0x400')
        A(f's_cbranch_scc1 {L}')
        for r in range(16, 32):
            A(f'v_mov_b32 v{self.S+r}, v13')
        self.lab(L)
    def qk_mfma(self, n):
        Q, F, S = self.Q, self.F, self.S
        T, s = n >> 3, n & 7
        c = '0' if s == 0 else f'v[{S+16*T}:{S+16*T+15}]'
        return f'v_mfma_f32_32x32x16_bf16 v[{S+16*T}:{S+16*T+15}], v[{F+4*n}:{F+4*n+3}], v[{Q+4*s}:{Q+4*s+3}], {c}'
    def pv_mfma(self, n):
        O, F, P = self.O, self.F, self.P
        ks, j = n >> 2, n & 3
        return f'v_mfma_f32_32x32x16_bf16 v[{O+16*j}:{O+16*j+15}], v[{F+4*n}:{F+4*n+3}], v[{P+4*ks}:{P+4*ks+3}], v[{O+16*j}:{O+16*j+15}]'
    def vread(self, n):
        F = self.F
        ks, j = n >> 2, n & 3
        return f'ds_read_b128 v[{F+4*n}:{F+4*n+3}], v2 offset:{VOFF + ks*4096 + j*1024}'
    def phase_begin(self):
        self.A('ds_read_b32 v14, v10')
        self.A('v_add_u32 v10, s39, v10')
    def phase_end(self):
        A = self.A
        A('s_waitcnt lgkmcnt(0)')
        if self.dk == 2:
            A('s_mov_b32 s28, s27')
            A('v_readfirstlane_b32 s27, v14')
            A('s_sub_u32 s39, 0, s39')
            A('s_and_b32 s27, s27, 0xffff')
        else:
            A('v_readfirstlane_b32 s28, v14')
            A('s_sub_u32 s39, 0, s39')
            A('s_and_b32 s28, s28, 0xffff')
        L = self.newlab('el')
        A('s_cmp_eq_u32 s30, 3')
        A(f's_cbranch_scc1 {L}')
        A('s_call_b64 s[88:89], L_elect')
        self.lab(L)
    def step_full(self):
        A = self.A
        O = self.O
        self.phase_begin()
        self.kreads()
        for n in range(16):
            A('s_waitcnt lgkmcnt(14)')
            A(self.qk_mfma(n))
            A(self.vread(n))
            for r in range(4*n, 4*n+4):
                A(f'v_mul_f32 v{O+r}, v5, v{O+r}')
        A('v_add_u32 v1, s39, v1')
        ops = self.softmax_ops()
        def w(t):
            if t.startswith('#'): return 0
            if t.startswith('v_exp'): return 2
            return 1
        per = sum(w(t) for t in ops) / 16.0
        idx, acc, since_qk = 0, 0.0, 6
        for n in range(16):
            A(f's_waitcnt lgkmcnt({min(14, 15-n)})'); since_qk += 1
            A(self.pv_mfma(n)); since_qk += 1
            if n == 15:
                A('v_add_u32 v2, s39, v2')
            target = per * (n + 1)
            while idx < len(ops) and (acc < target or n == 15):
                t = ops[idx]
                if t == '#T1':
                    if since_qk < 12:
                        A(f's_nop {12 - since_qk - 1}')
                        since_qk = 12
                    self.mask_half()
                    idx += 1
                    continue
                if t.startswith('#P'):
                    if n < 4*int(t[2:]) + 3:
                        break
                    idx += 1
                    continue
                A(t); since_qk += 1
                acc += w(t)
                idx += 1
        assert idx == len(ops)
        self.phase_end()
    def step_first(self):
        A = self.A
        self.phase_begin()
        self.kreads()
        for n in range(16):
            A(f's_waitcnt lgkmcnt({min(14, 15-n)})')
            A(self.qk_mfma(n))
        A('v_add_u32 v1, s39, v1')
        A('v_add_u32 v2, s39, v2')
        cnt = 2
        for t in self.softmax_ops():
            if t == '#T1':
                if cnt < 12:
                    A(f's_nop {12 - cnt - 1}')
                continue
            if t.startswith('#'): continue
            A(t); cnt += 1
        self.phase_end()
    def step_last(self):
        A = self.A
        O = self.O
        for n in range(16):
            A(self.vread(n))
        for r in range(32):
            A(f'v_mul_f32 v{O+r}, v5, v{O+r}')
        for n in range(16):
            A(f's_waitcnt lgkmcnt({min(14, 15-n)})')
            A(self.pv_mfma(n))
            if n < 2:
                for r in range(32 + 16*n, 48 + 16*n):
                    A(f'v_mul_f32 v{O+r}, v5, v{O+r}')

    def elect_sub(self):
        A = self.A
        dl = self.n0 - 2 - self.dk
        done = 2 if self.sent else 3
        self.lab('L_elect')
        A('s_add_u32 s31, s31, 1')
        if self.sent:
            A('s_cmp_eq_u32 s30, 2')
            A('s_cbranch_scc1 L_el_hs')
        A('s_cmp_eq_u32 s30, 0')
        A('s_cbranch_scc1 L_el_nold')
        A('s_waitcnt vmcnt(0)')
        A('v_readfirstlane_b32 s80, v32')
        A('s_bitcmp1_b32 s80, 8')
        A(f's_cselect_b32 s30, {done}, 0')
        A('s_cbranch_scc1 L_el_ret')
        self.lab('L_el_nold')
        A(f's_cmp_ge_u32 s31, {dl}')
        A('s_cbranch_scc1 L_el_vote')
        A('s_cmp_lt_u32 s31, s29')
        A('s_cbranch_scc1 L_el_ret')
        A('v_mov_b32 v33, 0')
        A('global_load_dword v32, v33, s[76:77] sc1')
        A('s_mov_b32 s30, 1')
        A('s_branch L_el_ret')
        self.lab('L_el_vote')
        A('s_mov_b32 s80, 1')
        self.lab('L_el_try')
        A('s_atomic_add s80, s[76:77], 0 glc')
        A('s_waitcnt lgkmcnt(0)')
        A('s_cmp_eq_u32 s80, 0')
        A('s_cbranch_scc1 L_el_init')
        A('s_bitcmp1_b32 s80, 8')
        A('s_mov_b32 s80, 0')
        A('s_cbranch_scc0 L_el_try')
        A(f's_mov_b32 s30, {done}')
        A('s_branch L_el_ret')
        self.lab('L_el_init')
        for r in range(32, 36):
            A(f'v_mov_b32 v{r}, 0')
        A('buffer_store_dwordx4 v[32:35], v9, s[64:67], 0 offen sc1')
        A('s_waitcnt vmcnt(0)')
        A('s_movk_i32 s80, 0x100')
        A('s_atomic_add s80, s[76:77], 0')
        A(f's_mov_b32 s30, {done}')
        if self.sent:
            A('s_branch L_el_ret')
            self.lab('L_el_hs')
            A(f's_cmp_le_u32 s31, {dl}')
            A('s_cbranch_scc1 L_el_ret')
            A('s_mov_b32 s80, s26')
            A('s_atomic_add s80, s[78:79], 0 glc')
            A('s_waitcnt lgkmcnt(0)')
            A('s_add_u32 s80, s80, s26')
            A('s_mov_b32 s26, 0')
            A('s_bfe_u32 s80, s80, 0x30008')
            A('s_cmp_eq_u32 s80, 4')
            A('s_cselect_b32 s30, 3, 2')
        self.lab('L_el_ret')
        A('s_setpc_b64 s[88:89]')

    def pack_quarter(self, a, T):
        O = self.O
        for b in range(4):
            r = 4*a + b
            self.A(f'v_cvt_pk_bf16_f32 v{T+2*b}, v{O+r}, v{O+16+r}')
            self.A(f'v_cvt_pk_bf16_f32 v{T+2*b+1}, v{O+32+r}, v{O+48+r}')
        if self.sent:
            for p in range(8):
                self.A(f'v_min_u32 v{T+p}, -2, v{T+p}')
    def pub_quarter(self, a):
        st = self.o['stflags']
        T = self.Q + 8*a
        self.pack_quarter(a, T)
        vo = 9 if a < 2 else 14
        off = (a & 1) * 2048
        self.A(f'buffer_store_dwordx4 v[{T}:{T+3}], v{vo}, s[12:15], s21 offen offset:{off} {st}')
        self.A(f'buffer_store_dwordx4 v[{T+4}:{T+7}], v{vo}, s[12:15], s21 offen offset:{off+1024} {st}')
    def acc_piece(self, src, w, first):
        A = self.A
        for p in range(8):
            A(f'v_lshlrev_b32 v6, 16, v{src+p}')
            A(f'v_and_b32 v7, 0xffff0000, v{src+p}')
            op = 'v_mul_f32' if first else 'v_fmac_f32'
            A(f'{op} v{48+2*p}, v{w}, v6')
            A(f'{op} v{48+2*p+1}, v{w}, v7')
    def store_quarter(self, sa):
        A = self.A
        for p in range(8):
            A(f'v_cvt_pk_bf16_f32 v{32+p}, v{48+2*p}, v{48+2*p+1}')
        A(f's_lshl_b32 s80, {sa}, 6')
        A('s_add_u32 s80, s80, s23')
        A('buffer_store_dwordx4 v[32:35], v28, s[8:11], s80 offen')
        A('buffer_store_dwordx4 v[36:39], v28, s[8:11], s80 offen offset:16')
    def load_pieces(self):
        F = self.F
        for k in range(3):
            self.A(f'buffer_load_dwordx2 v[{16+2*k}:{17+2*k}], v15, s[16:19], s{73+k} offen sc1')
        for k in range(3):
            self.A(f'buffer_load_dwordx4 v[{F+8*k}:{F+8*k+3}], v9, s[12:15], s{70+k} offen sc1')
            self.A(f'buffer_load_dwordx4 v[{F+8*k+4}:{F+8*k+7}], v9, s[12:15], s{70+k} offen offset:1024 sc1')
    def weights(self, mregs, lregs):
        A = self.A
        A(f'v_max3_f32 v6, v{mregs[0]}, v{mregs[1]}, v{mregs[2]}')
        A(f'v_max_f32 v6, v6, v{mregs[3]}')
        for k in range(4):
            A(f'v_sub_f32 v{24+k}, v{mregs[k]}, v6')
        for k in range(4):
            A(f'v_mul_f32 v{24+k}, s20, v{24+k}')
        for k in range(4):
            A(f'v_exp_f32 v{24+k}, v{24+k}')
        A('s_nop 0')
        A(f'v_mul_f32 v6, v24, v{lregs[0]}')
        for k in range(1, 4):
            A(f'v_fmac_f32 v6, v{24+k}, v{lregs[k]}')
        A('v_rcp_f32 v6, v6')
        A('s_nop 0')
        for k in range(4):
            A(f'v_mul_f32 v{24+k}, v{24+k}, v6')

    def consumer(self):
        A = self.A
        O, Q, F, S, P = self.O, self.Q, self.F, self.S, self.P
        st = self.o['stflags']
        A('v_and_b32 v6, 31, v0')
        A('v_bfe_u32 v7, v0, 5, 1')
        A('v_lshlrev_b32 v8, 8, v6')
        A('v_lshl_add_u32 v8, v7, 4, v8')
        A('s_lshl_b32 s23, s3, 13')
        A('s_lshl_b32 s22, s4, 15')
        A('s_mov_b32 s10, 0x8000')
        A('s_mov_b32 s11, 0x20000')
        A('s_waitcnt lgkmcnt(0)')
        self.stamp_init(11)
        A('s_add_u32 s8, s40, s22')
        A('s_addc_u32 s9, s41, 0')
        for s in range(8):
            A(f'buffer_load_dwordx4 v[{Q+4*s}:{Q+4*s+3}], v8, s[8:11], s23 offen offset:{32*s} {self.o["qflags"]}')
        A('s_lshl_b32 s76, s4, 2')
        A('s_add_u32 s76, s56, s76')
        A('s_addc_u32 s77, s57, 0')
        A(f's_mov_b32 s20, 0x{f32bits(CEXP):08x}')
        A(f'v_mul_u32_u24 v1, {KROW}, v6')
        A('v_lshl_add_u32 v1, v7, 4, v1')
        A('v_and_b32 v2, 63, v0')
        A('v_lshlrev_b32 v2, 4, v2')
        A('v_mov_b32 v9, v2')
        A('v_lshrrev_b32 v15, 1, v9')
        A('v_lshlrev_b32 v28, 8, v6')
        A('v_lshl_add_u32 v28, v7, 5, v28')
        A('v_mov_b32 v12, v28')
        A(f'v_mov_b32 v10, {WOFF}')
        A(f'v_mov_b32 v3, 0x{NEG:x}')
        A(f'v_mov_b32 v13, 0x{NEG:x}')
        A('v_mov_b32 v4, 0')
        A('s_lshl_b32 s21, s4, 17')
        A('s_add_u32 s12, s58, s21')
        A('s_addc_u32 s13, s59, 0')
        A('s_mov_b32 s14, 0x20000')
        A('s_mov_b32 s15, 0x20000')
        A('s_lshl_b32 s21, s4, 13')
        A(f's_add_u32 s21, s21, 0x{ML_OFF:x}')
        A('s_add_u32 s16, s58, s21')
        A('s_addc_u32 s17, s59, 0')
        A('s_mov_b32 s18, 0x2000')
        A('s_mov_b32 s19, 0x20000')
        A('s_lshl_b32 s21, s4, 10')
        A(f's_add_u32 s21, s21, 0x{SY_OFF:x}')
        A('s_add_u32 s64, s58, s21')
        A('s_addc_u32 s65, s59, 0')
        A('s_mov_b32 s66, 0x400')
        A('s_mov_b32 s67, 0x20000')
        A('s_lshl_b32 s21, s3, 7')
        A('s_add_u32 s21, s21, 128')
        A('s_add_u32 s78, s64, s21')
        A('s_addc_u32 s79, s65, 0')
        A('s_lshl_b32 s21, s5, 15')
        A('s_add_u32 s21, s21, s23')
        A('s_lshl_b32 s24, s3, 9')
        A('s_lshl_b32 s25, s5, 11')
        A('s_add_u32 s25, s25, s24')
        A('s_lshl_b32 s82, s5, 11')
        A('s_add_u32 s82, s82, s23')
        for k in range(3):
            A(f's_add_u32 s68, s5, {k+1}')
            A('s_and_b32 s68, s68, 3')
            A(f's_lshl_b32 s{70+k}, s68, 15')
            A(f's_add_u32 s{70+k}, s{70+k}, s82')
            A(f's_lshl_b32 s{73+k}, s68, 11')
            A(f's_add_u32 s{73+k}, s{73+k}, s24')
        if self.sent:
            for r in range(32, 36):
                A(f'v_mov_b32 v{r}, -1')
            A('v_add_u32 v14, 0x1000, v9')
            A(f'buffer_store_dwordx2 v[32:33], v15, s[16:19], s25 offen {st}')
            for c in range(8):
                Ls = self.newlab('cl')
                if c % 2 == 0:
                    A(f's_cmp_eq_u32 s5, {c >> 1}')
                    A(f's_cbranch_scc1 {Ls}')
                    A(f'buffer_store_dwordx4 v[32:35], v{9 if c < 4 else 14}, s[12:15], s21 offen offset:{1024*(c & 3)} {st}')
                    A(f'buffer_store_dwordx4 v[32:35], v{9 if c < 4 else 14}, s[12:15], s21 offen offset:{1024*((c+1) & 3)} {st}')
                    self.lab(Ls)
            A('s_movk_i32 s26, 0x100')
        for r in range(64):
            A(f'v_mov_b32 v{O+r}, 0')
        A(f's_mov_b32 s39, {SLOTSZ}')
        A('s_movk_i32 s27, 0x400')
        A('s_cmp_eq_u32 s3, 0')
        A(f's_cselect_b32 s30, 0, {2 if self.sent else 3}')
        A('s_mov_b32 s31, 0')
        A('s_add_u32 s29, s5, 1')
        Le = self.newlab('e0')
        A('s_or_b32 s80, s5, s3')
        A('s_cmp_lg_u32 s80, 0')
        A(f's_cbranch_scc1 {Le}')
        A('s_call_b64 s[88:89], L_el_vote')
        self.lab(Le)
        A('s_waitcnt vmcnt(0)')
        A('s_add_u32 s8, s54, s22')
        A('s_addc_u32 s9, s55, 0')
        self.barrier(pre=True)
        self.step_first()
        self.lab('L_cloop')
        self.barrier(pre=True)
        A('s_cmp_lt_u32 s28, 0x100')
        A('s_cbranch_scc1 L_clast')
        self.step_full()
        A('s_branch L_cloop')
        self.elect_sub()
        self.lab('L_clast')
        self.stamp()
        self.step_last()
        A('v_mov_b32 v7, v4')
        A('v_mov_b32 v28, v12')
        A('v_mov_b32 v12, v3')
        A('v_permlane32_swap_b32 v4, v7')
        A('v_add_f32 v13, v4, v7')
        A(f'buffer_store_dwordx2 v[12:13], v15, s[16:19], s25 offen {st}')
        A('v_add_u32 v14, 0x1000, v9')
        A('s_nop 4')
        for a in range(4):
            Ls = self.newlab('pq')
            A(f's_cmp_eq_u32 s5, {a}')
            A(f's_cbranch_scc1 {Ls}')
            self.pub_quarter(a)
            self.lab(Ls)
        A(f's_mov_b32 s84, {int(self.o["spin"])}')
        A('s_mov_b32 s83, 1')
        if self.sent:
            A('s_cmp_lg_u32 s30, 3')
            A('s_cbranch_scc1 L_cslow')
            self.load_pieces()
        for a in range(4):
            Ls = self.newlab('oq')
            A(f's_cmp_lg_u32 s5, {a}')
            A(f's_cbranch_scc1 {Ls}')
            for b in range(4):
                for j in range(4):
                    A(f'v_mov_b32 v{48+4*b+j}, v{O+16*j+4*a+b}')
            self.lab(Ls)
        if self.sent:
            A('s_waitcnt vmcnt(9)')
            self.stamp()
            A('s_atomic_add s83, s[78:79], 0 glc')
            self.lab('L_cspoll')
            A('s_waitcnt vmcnt(0)')
            A(f'v_max3_u32 v6, v17, v19, v21')
            for p in range(0, 24, 2):
                A(f'v_max3_u32 v6, v6, v{F+p}, v{F+p+1}')
            A('v_cmp_eq_u32 vcc, -1, v6')
            A('s_nop 1')
            A('s_cmp_eq_u64 vcc, 0')
            A('s_cbranch_scc1 L_cfinish')
            A('s_cmp_eq_u32 s84, 0')
            A('s_cbranch_scc1 L_cgiveup0')
            A('s_sub_u32 s84, s84, 1')
            self.load_pieces()
            A('s_branch L_cspoll')
            self.lab('L_cgiveup0')
            A('s_waitcnt lgkmcnt(0)')
            A('s_branch L_cgiveup')
            self.lab('L_cslow')
            for a in range(4):
                Ls = self.newlab('oq')
                A(f's_cmp_lg_u32 s5, {a}')
                A(f's_cbranch_scc1 {Ls}')
                for b in range(4):
                    for j in range(4):
                        A(f'v_mov_b32 v{48+4*b+j}, v{O+16*j+4*a+b}')
                self.lab(Ls)
        A('s_waitcnt vmcnt(0)')
        self.stamp()
        A('s_atomic_add s83, s[78:79], 0 glc')
        A('s_waitcnt lgkmcnt(0)')
        A('s_and_b32 s80, s83, 7')
        A('s_add_u32 s80, s80, 1')
        self.lab('L_cpoll')
        A('s_cmp_eq_u32 s80, 4')
        A('s_cbranch_scc1 L_cready')
        A('s_cmp_eq_u32 s84, 0')
        A('s_cbranch_scc1 L_cgiveup')
        A('s_sub_u32 s84, s84, 1')
        A('s_mov_b32 s80, 0')
        A('s_atomic_add s80, s[78:79], 0 glc')
        A('s_waitcnt lgkmcnt(0)')
        A('s_and_b32 s80, s80, 7')
        A('s_branch L_cpoll')
        self.lab('L_cready')
        self.load_pieces()
        A('s_waitcnt vmcnt(0)')
        self.lab('L_cfinish')
        self.stamp()
        self.weights((16, 18, 20, 12), (17, 19, 21, 13))
        for e in range(16):
            A(f'v_mul_f32 v{48+e}, v27, v{48+e}')
        for k in range(3):
            self.acc_piece(F+8*k, 24+k, False)
        self.store_quarter('s5')
        A('s_waitcnt lgkmcnt(0)')
        A('s_and_b32 s80, s83, 7')
        A('s_cmp_lg_u32 s80, 3')
        A('s_cbranch_scc1 L_cend')
        A('s_bfe_u32 s85, s83, 0x40004')
        A('s_branch L_cmem')
        self.lab('L_cgiveup')
        for a in range(4):
            Ls = self.newlab('gq')
            A(f's_cmp_lg_u32 s5, {a}')
            A(f's_cbranch_scc1 {Ls}')
            self.pub_quarter(a)
            self.lab(Ls)
        A('s_waitcnt vmcnt(0)')
        A('s_lshl_b32 s80, 16, s5')
        A('s_atomic_or s80, s[78:79], 0 glc')
        A('s_waitcnt lgkmcnt(0)')
        A('s_and_b32 s80, s80, 7')
        A('s_cmp_lg_u32 s80, 4')
        A('s_cbranch_scc1 L_cend')
        A('s_lshl_b32 s85, 1, s5')
        self.lab('L_cmem')
        A('s_cmp_eq_u32 s85, 0')
        A('s_cbranch_scc1 L_cend')
        A('s_ff1_i32_b32 s86, s85')
        A('s_lshl_b32 s80, 1, s86')
        A('s_andn2_b32 s85, s85, s80')
        A('s_and_b32 s86, s86, 3')
        A('s_lshl_b32 s80, s86, 11')
        A('s_add_u32 s80, s80, s23')
        A('s_mov_b32 s81, s24')
        for k in range(4):
            A(f'buffer_load_dwordx2 v[{16+2*k}:{17+2*k}], v15, s[16:19], s81 offen sc1')
            A(f'buffer_load_dwordx4 v[{F+8*k}:{F+8*k+3}], v9, s[12:15], s80 offen sc1')
            A(f'buffer_load_dwordx4 v[{F+8*k+4}:{F+8*k+7}], v9, s[12:15], s80 offen offset:1024 sc1')
            A('s_add_u32 s80, s80, 0x8000')
            A('s_add_u32 s81, s81, 0x800')
        A('s_waitcnt vmcnt(0)')
        self.weights((16, 18, 20, 22), (17, 19, 21, 23))
        for k in range(4):
            self.acc_piece(F+8*k, 24+k, k == 0)
        self.store_quarter('s86')
        A('s_branch L_cmem')
        self.lab('L_cend')
        self.stamp()
        self.stamp_out(14, 4)
        A('s_endpgm')

    def build(self):
        hdr = open('cdna_kernels/' + NAME + '.s.ref').read().split('\n')
        for line in hdr:
            if line.startswith('; Override'): break
            self.raw(line)
        self.raw(f'; @launch grid=(256,1,1) block=(512,1,1) lds={LDS_BYTES}')
        self.raw('.amdgcn_target "amdgcn-amd-amdhsa--gfx950"')
        self.raw('.text')
        A = self.A
        self.raw(f'.globl {NAME}_kernel')
        self.raw('.p2align 8')
        self.raw(f'.type {NAME}_kernel,@function')
        self.lab(f'{NAME}_kernel')
        if self.o.get('stamp'): A('s_memrealtime s[90:91]')
        A('s_cmp_ge_u32 s2, 256')
        A('s_cbranch_scc1 L_exit')
        A('s_load_dwordx16 s[40:55], s[0:1], 0')
        A('s_load_dwordx4 s[56:59], s[0:1], 64')
        A('v_lshrrev_b32 v1, 6, v0')
        if int(self.o.get('map', 0)) == 0:
            A('s_lshr_b32 s4, s2, 2')
            A('v_readfirstlane_b32 s3, v1')
            A('s_and_b32 s5, s2, 3')
            A('s_nop 2')
        elif int(self.o.get('map', 0)) == 2:
            A('s_lshr_b32 s4, s2, 3')
            A('v_readfirstlane_b32 s3, v1')
            A('s_and_b32 s5, s2, 1')
            A('s_lshr_b32 s6, s4, s5')
            A('s_and_b32 s6, s6, 1')
            A('s_add_u32 s7, s6, 1')
            A('s_lshr_b32 s7, s2, s7')
            A('s_sub_u32 s6, 2, s6')
            A('s_lshr_b32 s6, s2, s6')
            A('s_and_b32 s6, s6, 1')
            A('s_lshr_b32 s60, s4, 2')
            A('s_and_b32 s60, s60, s5')
            A('s_xor_b32 s7, s7, s60')
            A('s_and_b32 s7, s7, 1')
            A('s_lshl_b32 s4, s4, 1')
            A('s_or_b32 s4, s4, s7')
            A('s_lshl_b32 s6, s6, 1')
            A('s_or_b32 s5, s5, s6')
        else:
            A('s_lshr_b32 s4, s2, 3')
            A('v_readfirstlane_b32 s3, v1')
            A('s_lshl_b32 s4, s4, 1')
            A('s_bfe_u32 s5, s2, 0x10001')
            A('s_or_b32 s4, s4, s5')
            A('s_bfe_u32 s5, s2, 0x10002')
            A('s_lshl_b32 s5, s5, 1')
            A('s_and_b32 s6, s2, 1')
            A('s_or_b32 s5, s5, s6')
        A('s_cmp_lt_u32 s3, 4')
        A('s_cbranch_scc1 L_consumer')
        A('s_sub_u32 s3, s3, 4')
        self.producer()
        self.lab('L_consumer')
        self.consumer()
        self.lab('L_exit')
        A('s_endpgm')
        r = self.raw
        r('.section .rodata,"a"')
        r('.p2align 6')
        r(f'.amdhsa_kernel {NAME}_kernel')
        r('  .amdhsa_next_free_vgpr 256')
        r('  .amdhsa_next_free_sgpr 102')
        r('  .amdhsa_accum_offset 256')
        r('  .amdhsa_group_segment_fixed_size 0')
        r('  .amdhsa_kernarg_size 80')
        r('  .amdhsa_user_sgpr_count 2')
        r('  .amdhsa_user_sgpr_kernarg_segment_ptr 1')
        r('  .amdhsa_system_sgpr_workgroup_id_x 1')
        r('  .amdhsa_float_denorm_mode_32 3')
        r('.end_amdhsa_kernel')
        return '\n'.join(self.L) + '\n'

DEFAULTS = dict(ldflags='nt', stflags='sc1', qflags='', n0='11', spin='300', dk='1', th='0', sent='0')
if __name__ == '__main__':
    opts = dict(DEFAULTS)
    out = sys.argv[1] if len(sys.argv) > 1 else 'cdna_kernels/' + NAME + '.s'
    for kv in sys.argv[2:]:
        k, v = kv.split('=', 1)
        opts[k] = v
    open(out, 'w').write(Gen(opts).build())
```

```python
import sys, struct
from gen7 import Gen as Gen7, NAME, f32bits, CEXP, KROW, VOFF, WOFF, SLOTSZ, LDS_BYTES, ML_OFF, SY_OFF, NEG, DEFAULTS

THR = 4096.0

class Gen(Gen7):
    M16 = 32
    def __init__(self, opts):
        super().__init__(opts)
        assert self.dk == 1 and not self.sent
        self.pk = int(opts.get('pk', 0))

    def deq_K(self, sc, d):
        A = self.A
        S, N, T = self.PS, self.PN, self.PT
        for j in range(4):
            src = sc + (j >> 1)
            A(f'v_and_b32 v{S+j}, 0xffff0000, v{src}' if j & 1 else f'v_lshlrev_b32 v{S+j}, 16, v{src}')
        for j in range(4):
            src = sc + 2 + (j >> 1)
            A(f'v_and_b32 v{N+j}, 0xffff0000, v{src}' if j & 1 else f'v_lshlrev_b32 v{N+j}, 16, v{src}')
        for j in range(4):
            A(f'v_mul_f32 v{S+j}, s36, v{S+j}')
        for j in range(4):
            A(f'v_mul_f32_e64 v{N+j}, -v{N+j}, v{S+j}')
        for i in range(8):
            b = d + 4*i
            for j in range(4):
                A(f'v_cvt_f32_i32 v{b+j}, v{b+j}')
            if self.pk:
                for j in (0, 2):
                    A(f'v_pk_fma_f32 v[{b+j}:{b+j+1}], v[{b+j}:{b+j+1}], v[{S+j}:{S+j+1}], v[{N+j}:{N+j+1}]')
            else:
                for j in range(4):
                    A(f'v_fma_f32 v{b+j}, v{b+j}, v{S+j}, v{N+j}')
            t = T + 2*(i & 3)
            A(f'v_cvt_pk_bf16_f32 v{t}, v{b}, v{b+1}')
            A(f'v_cvt_pk_bf16_f32 v{t+1}, v{b+2}, v{b+3}')
            A(f'ds_write_b64 v4, v[{t}:{t+1}] offset:{(8*(i>>2) + (i&3))*KROW}')
    def deq_V(self, sc, d):
        if not self.pk:
            return super().deq_V(sc, d)
        A = self.A
        S, N = self.PS, self.PN
        for i in range(8):
            src = sc + (i >> 1)
            A(f'v_and_b32 v{S+i}, 0xffff0000, v{src}' if i & 1 else f'v_lshlrev_b32 v{S+i}, 16, v{src}')
        for i in range(8):
            src = sc + 4 + (i >> 1)
            A(f'v_and_b32 v{N+i}, 0xffff0000, v{src}' if i & 1 else f'v_lshlrev_b32 v{N+i}, 16, v{src}')
        for i in range(8):
            A(f'v_mul_f32_e64 v{N+i}, -v{N+i}, v{S+i}')
        for i in range(8):
            b = d + 4*i
            for j in range(4):
                A(f'v_cvt_f32_i32 v{b+j}, v{b+j}')
            e = i & 1
            ps, pn = S + (i & ~1), N + (i & ~1)
            for j in (0, 2):
                A(f'v_pk_fma_f32 v[{b+j}:{b+j+1}], v[{b+j}:{b+j+1}], v[{ps}:{ps+1}], v[{pn}:{pn+1}] op_sel:[0,{e},{e}] op_sel_hi:[1,{e},{e}]')
        for j in range(4):
            t = (S, S+4, N, N+4)[j]
            for p in range(4):
                A(f'v_cvt_pk_bf16_f32 v{t+p}, v{d+4*(2*p)+j}, v{d+4*(2*p+1)+j}')
            A(f'ds_write_b128 v5, v[{t}:{t+3}] offset:{1024*j}')

    def producer(self):
        A = self.A
        KA, VA, VB = self.KA, self.VA, self.VB
        n0, NPB = self.n0, self.NPB
        A('v_and_b32 v6, 31, v0')
        A('v_bfe_u32 v7, v0, 5, 1')
        A('v_lshlrev_b32 v1, 4, v6')
        A('v_lshl_add_u32 v1, v7, 12, v1')
        A('v_lshlrev_b32 v2, 3, v6')
        A('v_lshlrev_b32 v3, 4, v7')
        A('s_lshl_b32 s68, s4, 21')
        A('s_lshl_b32 s69, s4, 15')
        A('s_lshl_b32 s70, s4, 13')
        A(f's_mul_i32 s87, s5, {4*n0}')
        A('s_add_u32 s38, s87, s3')
        A('s_add_u32 s87, s87, 0x400')
        self.set_K()
        self.set_V()
        for b, n in ((8, 0x200000), (12, 0x200000), (16, 0x8000), (20, 0x8000), (24, 0x2000), (28, 0x2000)):
            A(f's_mov_b32 s{b+2}, 0x{n:x}')
            A(f's_mov_b32 s{b+3}, 0x20000')
        A('s_waitcnt lgkmcnt(0)')
        self.stamp_init(190)
        A('s_add_u32 s8, s42, s68')
        A('s_addc_u32 s9, s43, 0')
        A('s_add_u32 s16, s46, s69')
        A('s_addc_u32 s17, s47, 0')
        A('s_add_u32 s20, s48, s69')
        A('s_addc_u32 s21, s49, 0')
        self.issue_K(*KA)
        A('s_add_u32 s12, s44, s68')
        A('s_addc_u32 s13, s45, 0')
        A('s_add_u32 s24, s50, s70')
        A('s_addc_u32 s25, s51, 0')
        A('s_add_u32 s28, s52, s70')
        A('s_addc_u32 s29, s53, 0')
        self.issue_V(*VA)
        A(f's_mul_i32 s39, s3, {16*KROW}')
        A(f'v_mul_u32_u24 v4, {4*KROW}, v7')
        A('v_add3_u32 v4, v4, v2, s39')
        A('v_and_b32 v5, 63, v0')
        A('v_lshlrev_b32 v5, 4, v5')
        A('s_lshl_b32 s39, s3, 12')
        A(f's_add_u32 s39, s39, {VOFF}')
        A('v_add_u32 v5, s39, v5')
        A(f's_mov_b32 s39, {SLOTSZ}')
        A(f'v_mov_b32 v6, {WOFF}')
        A(f's_mov_b32 s36, 0x{f32bits(CEXP):08x}')
        A('s_lshl_b32 s68, s4, 10')
        A(f's_add_u32 s68, s68, 0x{SY_OFF:x}')
        A('s_add_u32 s76, s58, s68')
        A('s_addc_u32 s77, s59, 0')
        A('s_mov_b32 s84, 0')
        A(f's_mov_b32 s85, {0 if NPB > 0 else 1}')
        A(f's_mov_b32 s86, {n0-2}')
        A('s_cmp_eq_u32 s3, 0')
        A('s_cselect_b32 s86, s86, 0x7fff')
        A('s_mov_b32 s82, 4')
        A('v_mov_b32 v7, -1')
        A('ds_write_b32 v6, v7')
        A(f'ds_write_b32 v6, v7 offset:{SLOTSZ}')
        A('s_add_u32 s87, s87, 4')
        A('s_add_u32 s38, s38, 4')
        self.set_K()
        self.set_V()
        A('s_waitcnt vmcnt(10)')
        self.stamp()
        self.deq_K(*KA)
        self.issue_K(*KA)
        self.issue_V(*VB)
        A('v_mov_b32 v7, s87')
        A('s_waitcnt lgkmcnt(0)')
        A('ds_write_b32 v6, v7')
        self.ptoggle()
        A('s_waitcnt lgkmcnt(0)')
        self.barrier(pre=True)
        self.lab('L_ploop')
        for par, Vb in ((1, VA), (0, VB)):
            A('s_mov_b32 s6, s87')
            A('s_cmp_lt_u32 s6, 0x100')
            A(f's_cbranch_scc1 L_plast{par}')
            A('s_add_u32 s84, s84, 1')
            Lst, Lgo, Lpoll, Lhave, Lnoi = (self.newlab(x) for x in ('st', 'go', 'pl', 'hv', 'ni'))
            A(f's_cmp_lt_u32 s84, {n0-1}')
            A(f's_cbranch_scc1 {Lst}')
            A('s_mov_b32 s87, 0xffff')
            A('s_cmp_lg_u32 s3, 0')
            A(f's_cbranch_scc1 {Lgo}')
            A('s_mov_b32 s87, 0')
            if NPB > 0:
                Lw = self.newlab('tw')
                A('s_cmp_lg_u32 s85, 0')
                A(f's_cbranch_scc1 {Lw}')
                A('s_waitcnt lgkmcnt(0)')
                A('s_mov_b32 s85, 1')
                A(f's_cmp_ge_u32 s80, {NPB}')
                A(f's_cbranch_scc1 {Lw}')
                A('s_mov_b32 s85, 0')
                A(f's_sub_u32 s81, {NPB}, s80')
                A('s_min_u32 s81, s81, s82')
                A('s_lshl_b32 s81, s81, 8')
                A(f's_add_u32 s87, s80, {16*n0}')
                A('s_or_b32 s87, s87, s81')
                A(f's_cmp_lt_u32 s80, {max(0, NPB - self.TH)}')
                A('s_cselect_b32 s82, 4, 2')
                self.lab(Lw)
            self.wwrite()
            A(f's_branch {Lgo}')
            self.lab(Lst)
            A('s_add_u32 s87, s87, 4')
            A('s_cmp_lg_u32 s3, 0')
            A(f's_cbranch_scc1 {Lgo}')
            self.wwrite()
            self.lab(Lgo)
            vfirst = int(self.o.get('vfirst', 1))
            if vfirst:
                A('s_waitcnt vmcnt(20)')
                self.deq_V(*Vb)
            A('s_waitcnt vmcnt(10)')
            self.deq_K(*KA)
            A('s_cmp_lg_u32 s87, 0xffff')
            A(f's_cbranch_scc1 {Lhave}')
            self.lab(Lpoll)
            A('ds_read_b32 v7, v6')
            A('s_waitcnt lgkmcnt(0)')
            A('v_readfirstlane_b32 s80, v7')
            A('s_lshr_b32 s81, s80, 16')
            A('s_cmp_lg_u32 s81, s84')
            A(f's_cbranch_scc1 {Lpoll}')
            A('s_and_b32 s87, s80, 0xffff')
            self.lab(Lhave)
            A('s_cmp_lt_u32 s87, 0x100')
            A(f's_cbranch_scc1 {Lnoi}')
            self.blk('s87')
            self.set_K()
            self.set_V()
            self.issue_K(*KA)
            if vfirst:
                self.issue_V(*Vb)
                self.lab(Lnoi)
            else:
                self.lab(Lnoi)
                self.deq_V(*Vb)
                Ln2 = self.newlab('n2')
                A('s_cmp_lt_u32 s87, 0x100')
                A(f's_cbranch_scc1 {Ln2}')
                self.issue_V(*Vb)
                self.lab(Ln2)
            self.ptoggle()
            A('s_waitcnt lgkmcnt(0)')
            if NPB > 0:
                Ld = self.newlab('dr')
                A('s_cmp_lt_u32 s84, s86')
                A(f's_cbranch_scc1 {Ld}')
                A('s_cmp_lg_u32 s85, 0')
                A(f's_cbranch_scc1 {Ld}')
                A('s_mov_b32 s80, s82')
                A('s_atomic_add s80, s[76:77], 0 glc')
                self.lab(Ld)
            self.barrier(pre=True)
        A('s_branch L_ploop')
        for par, Vb in ((1, VA), (0, VB)):
            self.lab(f'L_plast{par}')
            A('s_waitcnt vmcnt(0)')
            self.deq_V(*Vb)
            if par == 1:
                A('s_branch L_ptail')
        self.lab('L_ptail')
        A('s_waitcnt lgkmcnt(0)')
        self.barrier(pre=True)
        self.stamp_out(191, 0)
        A('s_endpgm')

    def qk_mfma(self, n):
        Q, F, S, M = self.Q, self.F, self.S, self.M16
        T, s = n >> 3, n & 7
        c = f'v[{M}:{M+15}]' if s == 0 else f'v[{S+16*T}:{S+16*T+15}]'
        return f'v_mfma_f32_32x32x16_bf16 v[{S+16*T}:{S+16*T+15}], v[{F+4*n}:{F+4*n+3}], v[{Q+4*s}:{Q+4*s+3}], {c}'
    def fast_ops(self):
        S, P = self.S, self.P
        a0, a1 = [], []
        for r in range(16):
            a0.append(f'v_exp_f32 v{S+r}, v{S+r}')
        a0.append(f'v_add_f32 v7, v{S}, v{S+1}')
        a0.append(f'v_add_f32 v8, v{S+2}, v{S+3}')
        for r in range(4, 16, 2):
            a0.append(f'v_add_f32 v7, v7, v{S+r}')
            a0.append(f'v_add_f32 v8, v8, v{S+r+1}')
        a1.append('#T1')
        for r in range(16, 24):
            a1.append(f'v_exp_f32 v{S+r}, v{S+r}')
        a1.append('#P0')
        for k in range(4):
            a1.append(f'v_cvt_pk_bf16_f32 v{P+k}, v{S+2*k}, v{S+2*k+1}')
        for r in range(24, 32):
            a1.append(f'v_exp_f32 v{S+r}, v{S+r}')
        a1.append('#P1')
        for k in range(4, 8):
            a1.append(f'v_cvt_pk_bf16_f32 v{P+k}, v{S+2*k}, v{S+2*k+1}')
        for r in range(16, 32, 2):
            a1.append(f'v_add_f32 v7, v7, v{S+r}')
            a1.append(f'v_add_f32 v8, v8, v{S+r+1}')
        a1.append('#P2')
        for k in range(8, 12):
            a1.append(f'v_cvt_pk_bf16_f32 v{P+k}, v{S+2*k}, v{S+2*k+1}')
        a1.append('v_add_f32 v7, v7, v8')
        a1.append('v_cmp_nle_f32 vcc, v7, v13')
        a1.append('#P3')
        for k in range(12, 16):
            a1.append(f'v_cvt_pk_bf16_f32 v{P+k}, v{S+2*k}, v{S+2*k+1}')
        return a0, a1
    def exact_softmax(self, first):
        A = self.A
        S, P, M = self.S, self.P, self.M16
        A(f'v_max3_f32 v6, v{S}, v{S+1}, v{S+2}')
        for k in range(3, 31, 2):
            A(f'v_max3_f32 v6, v6, v{S+k}, v{S+k+1}')
        A(f'v_max_f32 v6, v6, v{S+31}')
        A('v_mov_b32 v7, v6')
        A('s_nop 1')
        A('v_permlane32_swap_b32 v6, v7')
        if first:
            A('v_max_f32 v6, v6, v7')
        else:
            A('v_max3_f32 v6, v6, v7, 0')
            A('v_exp_f32 v5, -v6')
        for r in range(16):
            A(f'v_sub_f32 v{M+r}, v{M+r}, v6')
        if not first:
            A('v_mul_f32 v4, v4, v5')
            A('s_mov_b32 s26, 1')
        for r in range(32):
            A(f'v_sub_f32 v{S+r}, v{S+r}, v6')
        for r in range(32):
            A(f'v_exp_f32 v{S+r}, v{S+r}')
        A(f'v_add_f32 v7, v{S}, v{S+1}')
        A(f'v_add_f32 v8, v{S+2}, v{S+3}')
        for r in range(4, 32, 2):
            A(f'v_add_f32 v7, v7, v{S+r}')
            A(f'v_add_f32 v8, v8, v{S+r+1}')
        for k in range(16):
            A(f'v_cvt_pk_bf16_f32 v{P+k}, v{S+2*k}, v{S+2*k+1}')
        A('v_add_f32 v7, v7, v8')
    def qk_plain(self):
        A = self.A
        self.kreads()
        for n in range(16):
            A(f's_waitcnt lgkmcnt({min(14, 15-n)})')
            A(self.qk_mfma(n))
        A('s_nop 7')
        A('s_nop 3')
    def rescale_if(self):
        A = self.A
        L = self.newlab('rs')
        A('s_cmp_eq_u32 s26, 0')
        A(f's_cbranch_scc1 {L}')
        for r in range(64):
            A(f'v_mul_f32 v{self.O+r}, v5, v{self.O+r}')
        A('s_mov_b32 s26, 0')
        self.lab(L)
    def step_first(self):
        A = self.A
        self.phase_begin()
        self.qk_plain()
        self.exact_softmax(True)
        A('v_mov_b32 v4, v7')
        A('v_add_u32 v1, s39, v1')
        A('v_add_u32 v2, s39, v2')
        self.phase_end()
    def rd(self, r):
        if r < 16:
            F = self.F
            T, s = r >> 3, r & 7
            return f'ds_read_b128 v[{F+4*r}:{F+4*r+3}], v1 offset:{T*32*KROW + 32*s}'
        return self.vread(r - 16)
    def step_full(self):
        A = self.A
        LA = int(self.o.get('la', 6))
        for r in range(LA):
            A(self.rd(r))
        self.phase_begin()
        self.rescale_if()
        a0, a1 = self.fast_ops()
        def w(t):
            if t.startswith('#'): return 0
            if t.startswith('v_exp'): return 2
            return 1
        capA = float(self.o.get('capa', 5))
        order = list(range(LA)) + ['W']
        def wait_for(m):
            younger = len(order) - 1 - order.index(m)
            A(f's_waitcnt lgkmcnt({min(14, younger)})')
        i0 = 0
        since0 = 0
        for n in range(16):
            wait_for(n); since0 += 1
            A(self.qk_mfma(n)); since0 += 1
            if n == 7: since0 = 0
            A(self.rd(n + LA)); order.append(n + LA); since0 += 1
            if n > 7 and since0 >= 12:
                acc = 0
                while i0 < len(a0) and acc + w(a0[i0]) <= capA:
                    A(a0[i0]); acc += w(a0[i0]); i0 += 1; since0 += 1
        ops = a0[i0:] + a1
        per = sum(w(t) for t in ops) / 16.0
        idx, acc, since_qk = 0, 0.0, 1
        for n in range(16):
            wait_for(16 + n); since_qk += 1
            A(self.pv_mfma(n)); since_qk += 1
            if 16 + n + LA < 32:
                A(self.rd(16 + n + LA)); order.append(16 + n + LA); since_qk += 1
            target = per * (n + 1)
            while idx < len(ops) and (acc < target or n == 15):
                t = ops[idx]
                if t == '#T1':
                    if since_qk < 12:
                        if n < 15 and since_qk < 9:
                            break
                        A(f's_nop {12 - since_qk - 1}')
                        since_qk = 12
                    self.mask_half()
                    idx += 1
                    continue
                if t.startswith('#P'):
                    if n < 4*int(t[2:]) + 3:
                        break
                    idx += 1
                    continue
                A(t); since_qk += 1
                acc += w(t)
                idx += 1
        assert idx == len(ops)
        A('s_cbranch_vccnz L_cslowmax')
        self.lab('L_cback')
        A('v_add_f32 v4, v4, v7')
        A('v_add_u32 v1, s39, v1')
        A('v_add_u32 v2, s39, v2')
        self.phase_end()
    def mask_half(self):
        if self.TH == 0: return
        A = self.A
        L = self.newlab('mk')
        A('s_cmp_ge_u32 s28, 0x400')
        A(f's_cbranch_scc1 {L}')
        for r in range(16, 32):
            A(f'v_mov_b32 v{self.S+r}, 0x{NEG:x}')
        self.lab(L)
    def slow_block(self):
        self.lab('L_cslowmax')
        self.qk_plain()
        self.mask_half()
        self.exact_softmax(False)
        self.A('s_branch L_cback')
    def elect_sub(self):
        self.slow_block()
        start = len(self.L)
        super().elect_sub()
        for i in range(start, len(self.L)):
            l = self.L[i]
            for r in (32, 33, 34, 35):
                l = l.replace(f'v{r},', f'v{r+16},').replace(f'v{r} ', f'v{r+16} ')
            l = l.replace('v[32:35]', 'v[48:51]')
            if l.rstrip().endswith('v32'): l = l.rstrip()[:-3] + 'v48'
            self.L[i] = l
    def step_last(self):
        A = self.A
        LA = int(self.o.get('la', 6))
        for n in range(LA):
            A(self.vread(n))
        self.rescale_if()
        for n in range(16):
            A(f's_waitcnt lgkmcnt({min(LA - 1, 15 - n)})')
            A(self.pv_mfma(n))
            if n + LA < 16:
                A(self.vread(n + LA))
        A(f'v_sub_f32 v3, 0, v{self.M16}')
    def weights(self, mregs, lregs):
        A = self.A
        A(f'v_max3_f32 v6, v{mregs[0]}, v{mregs[1]}, v{mregs[2]}')
        A(f'v_max_f32 v6, v6, v{mregs[3]}')
        for k in range(4):
            A(f'v_sub_f32 v{24+k}, v{mregs[k]}, v6')
        for k in range(4):
            A(f'v_exp_f32 v{24+k}, v{24+k}')
        A('s_nop 0')
        A(f'v_mul_f32 v6, v24, v{lregs[0]}')
        for k in range(1, 4):
            A(f'v_fmac_f32 v6, v{24+k}, v{lregs[k]}')
        A('v_rcp_f32 v6, v6')
        A('s_nop 0')
        for k in range(4):
            A(f'v_mul_f32 v{24+k}, v{24+k}, v6')
    def consumer(self):
        start = len(self.L)
        super().consumer()
        thr = float(self.o.get('thr', THR))
        for i in range(start, len(self.L)):
            if 'mask value' in self.L[i] or self.L[i].strip() == f'v_mov_b32 v13, 0x{NEG:x}':
                new = [f'    v_mov_b32 v13, 0x{f32bits(thr):08x}', '    s_mov_b32 s26, 0']
                new += [f'    v_mov_b32 v{self.M16+r}, 0' for r in range(16)]
                self.L[i:i+1] = new
                break
        else:
            raise RuntimeError('patch point not found')

if __name__ == '__main__':
    opts = dict(DEFAULTS)
    out = sys.argv[1] if len(sys.argv) > 1 else 'cdna_kernels/' + NAME + '.s'
    for kv in sys.argv[2:]:
        k, v = kv.split('=', 1)
        opts[k] = v
    open(out, 'w').write(Gen(opts).build())
```

```python
import sys, struct
NAME = 'standalone__kv_cache_quant_int4_int2_kv_with_per_channel_or_per_token_scales__sampling'

def f32bits(x):
    return struct.unpack('<I', struct.pack('<f', x))[0]

CEXP = (128.0 ** -0.5) * 1.4426950408889634
KROW = 272
VOFF = 64 * KROW
WOFF = VOFF + 16384
SLOTSZ = 33824
LDS_BYTES = 2 * SLOTSZ
ML_OFF = 8 << 20
SY_OFF = 9 << 20
NEG = 0xf149f2ca

class Gen:
    def __init__(self, opts):
        self.L = []
        self.o = opts
        self.n0 = int(opts['n0'])
        self.dk = int(opts['dk'])
        self.NPB = 256 - 16*self.n0
        self.TH = int(opts['th'])
        self.sent = int(opts['sent'])
        assert self.NPB >= 0 and self.n0 >= 6
        self.uid = 0
    def A(self, s): self.L.append('    ' + s)
    def lab(self, s): self.L.append(s + ':')
    def raw(self, s): self.L.append(s)
    def newlab(self, p):
        self.uid += 1
        return f'L_{p}_{self.uid}'

    def stamp_init(self, vr):
        if not self.o.get('stamp'): return
        A = self.A
        self.sv = vr
        A(f'v_mov_b32 v{vr}, 0')
        A('s_waitcnt lgkmcnt(0)')
        A(f'v_writelane_b32 v{vr}, s90, 0')
        A('s_mov_b32 m0, 1')
    def stamp(self):
        if not self.o.get('stamp'): return
        A = self.A
        A('s_waitcnt lgkmcnt(0)')
        A('s_memrealtime s[90:91]')
        A('s_waitcnt lgkmcnt(0)')
        A(f'v_writelane_b32 v{self.sv}, s90, m0')
        A('s_add_u32 m0, m0, 1')
    def barrier(self, pre=False, post=False):
        A = self.A
        on = self.o.get('stamp')
        if on and pre:
            A('s_memrealtime s[92:93]')
        A('s_barrier')
        if on and post:
            A('s_memrealtime s[92:93]')
        if on and (pre or post):
            A('s_waitcnt lgkmcnt(0)')
            A(f'v_writelane_b32 v{self.sv}, s92, m0')
            A('s_add_u32 m0, m0, 1')
    def stamp_out(self, tmp, wavebase):
        if not self.o.get('stamp'): return
        A = self.A
        A('s_waitcnt vmcnt(0)')
        self.stamp()
        A('s_mov_b32 s92, m0')
        A(f'v_writelane_b32 v{self.sv}, s92, 63')
        A('s_lshl_b32 s92, s4, 2')
        A('s_add_u32 s92, s92, s5')
        A('s_lshl_b32 s92, s92, 3')
        A('s_add_u32 s92, s92, s3')
        A(f's_add_u32 s92, s92, {wavebase}')
        A('s_lshl_b32 s92, s92, 8')
        A('s_add_u32 s92, s92, 0x4000000')
        A('s_add_u32 s96, s58, s92')
        A('s_addc_u32 s97, s59, 0')
        A('s_mov_b32 s98, 256')
        A('s_mov_b32 s99, 0x20000')
        A(f'v_and_b32 v{tmp}, 63, v0')
        A(f'v_lshlrev_b32 v{tmp}, 2, v{tmp}')
        A(f'buffer_store_dword v{self.sv}, v{tmp}, s[96:99], 0 offen')

    PS, PN, PT = 8, 16, 24
    KA, VA, VB, KB = (32, 36), (68, 76), (108, 116), (148, 152)
    def blk(self, st):
        A = self.A
        A(f's_and_b32 s38, {st}, 0xff')
        A('s_add_u32 s38, s38, s3')
        A(f's_lshr_b32 s37, {st}, 8')
        A('s_cmp_lt_u32 s3, s37')
        A('s_cselect_b32 s38, s38, 0x1ff')
    def set_K(self):
        A = self.A
        A('s_lshl_b32 s32, s38, 13')
        A('s_lshr_b32 s34, s38, 1')
        A('s_lshl_b32 s34, s34, 8')
    def set_V(self):
        A = self.A
        A('s_lshl_b32 s33, s38, 13')
        A('s_lshl_b32 s35, s38, 5')
    def issue_K(self, sc, d):
        nt = self.o['ldflags']; A = self.A
        A(f'buffer_load_dwordx2 v[{sc}:{sc+1}], v2, s[16:19], s34 offen {nt}')
        A(f'buffer_load_dwordx2 v[{sc+2}:{sc+3}], v2, s[20:23], s34 offen {nt}')
        for i in range(8):
            A(f'buffer_load_dwordx4 v[{d+4*i}:{d+4*i+3}], v1, s[8:11], s32 offen offset:{512*i} {nt}')
    def issue_V(self, sc, d):
        nt = self.o['ldflags']; A = self.A
        A(f'buffer_load_dwordx4 v[{sc}:{sc+3}], v3, s[24:27], s35 offen {nt}')
        A(f'buffer_load_dwordx4 v[{sc+4}:{sc+7}], v3, s[28:31], s35 offen {nt}')
        for i in range(8):
            A(f'buffer_load_dwordx4 v[{d+4*i}:{d+4*i+3}], v1, s[12:15], s33 offen offset:{512*i} {nt}')
    def deq_K(self, sc, d):
        A = self.A
        S, N, T = self.PS, self.PN, self.PT
        for j in range(4):
            src = sc + (j >> 1)
            A(f'v_and_b32 v{S+j}, 0xffff0000, v{src}' if j & 1 else f'v_lshlrev_b32 v{S+j}, 16, v{src}')
        for j in range(4):
            src = sc + 2 + (j >> 1)
            A(f'v_and_b32 v{N+j}, 0xffff0000, v{src}' if j & 1 else f'v_lshlrev_b32 v{N+j}, 16, v{src}')
        for j in range(4):
            A(f'v_mul_f32_e64 v{N+j}, -v{N+j}, v{S+j}')
        for i in range(8):
            b = d + 4*i
            for j in range(4):
                A(f'v_cvt_f32_i32 v{b+j}, v{b+j}')
            for j in range(4):
                A(f'v_fma_f32 v{b+j}, v{b+j}, v{S+j}, v{N+j}')
            t = T + 2*(i & 3)
            A(f'v_cvt_pk_bf16_f32 v{t}, v{b}, v{b+1}')
            A(f'v_cvt_pk_bf16_f32 v{t+1}, v{b+2}, v{b+3}')
            A(f'ds_write_b64 v4, v[{t}:{t+1}] offset:{(8*(i>>2) + (i&3))*KROW}')
    def deq_V(self, sc, d):
        A = self.A
        S, N = self.PS, self.PN
        for i in range(8):
            src = sc + (i >> 1)
            A(f'v_and_b32 v{S+i}, 0xffff0000, v{src}' if i & 1 else f'v_lshlrev_b32 v{S+i}, 16, v{src}')
        for i in range(8):
            src = sc + 4 + (i >> 1)
            A(f'v_and_b32 v{N+i}, 0xffff0000, v{src}' if i & 1 else f'v_lshlrev_b32 v{N+i}, 16, v{src}')
        for i in range(8):
            A(f'v_mul_f32_e64 v{N+i}, -v{N+i}, v{S+i}')
        for i in range(8):
            b = d + 4*i
            for j in range(4):
                A(f'v_cvt_f32_i32 v{b+j}, v{b+j}')
            for j in range(4):
                A(f'v_fma_f32 v{b+j}, v{b+j}, v{S+i}, v{N+i}')
        for j in range(4):
            t = (S, S+4, N, N+4)[j]
            for p in range(4):
                A(f'v_cvt_pk_bf16_f32 v{t+p}, v{d+4*(2*p)+j}, v{d+4*(2*p+1)+j}')
            A(f'ds_write_b128 v5, v[{t}:{t+3}] offset:{1024*j}')
    def ptoggle(self):
        A = self.A
        A('v_add_u32 v4, s39, v4')
        A('v_add_u32 v5, s39, v5')
        A('v_add_u32 v6, s39, v6')
        A('s_sub_u32 s39, 0, s39')
    def wwrite(self):
        A = self.A
        A('s_lshl_b32 s81, s84, 16')
        A('s_or_b32 s81, s81, s87')
        A('v_mov_b32 v7, s81')
        A('ds_write_b32 v6, v7')

    def producer(self):
        A = self.A
        KA, KB, VA, VB = self.KA, self.KB, self.VA, self.VB
        n0, NPB, dk = self.n0, self.NPB, self.dk
        A('v_and_b32 v6, 31, v0')
        A('v_bfe_u32 v7, v0, 5, 1')
        A('v_lshlrev_b32 v1, 4, v6')
        A('v_lshl_add_u32 v1, v7, 12, v1')
        A('v_lshlrev_b32 v2, 3, v6')
        A('v_lshlrev_b32 v3, 4, v7')
        A('s_lshl_b32 s68, s4, 21')
        A('s_lshl_b32 s69, s4, 15')
        A('s_lshl_b32 s70, s4, 13')
        A(f's_mul_i32 s87, s5, {4*n0}')
        A('s_add_u32 s38, s87, s3')
        A('s_add_u32 s87, s87, 0x400')
        self.set_K()
        self.set_V()
        for b, n in ((8, 0x200000), (12, 0x200000), (16, 0x8000), (20, 0x8000), (24, 0x2000), (28, 0x2000)):
            A(f's_mov_b32 s{b+2}, 0x{n:x}')
            A(f's_mov_b32 s{b+3}, 0x20000')
        A('s_waitcnt lgkmcnt(0)')
        self.stamp_init(190)
        A('s_add_u32 s8, s42, s68')
        A('s_addc_u32 s9, s43, 0')
        A('s_add_u32 s16, s46, s69')
        A('s_addc_u32 s17, s47, 0')
        A('s_add_u32 s20, s48, s69')
        A('s_addc_u32 s21, s49, 0')
        self.issue_K(*KA)
        A('s_add_u32 s12, s44, s68')
        A('s_addc_u32 s13, s45, 0')
        A('s_add_u32 s24, s50, s70')
        A('s_addc_u32 s25, s51, 0')
        A('s_add_u32 s28, s52, s70')
        A('s_addc_u32 s29, s53, 0')
        if dk == 2:
            A('s_add_u32 s87, s87, 4')
            A('s_add_u32 s38, s38, 4')
            self.set_K()
            self.issue_K(*KB)
        self.issue_V(*VA)
        A(f's_mul_i32 s39, s3, {16*KROW}')
        A(f'v_mul_u32_u24 v4, {4*KROW}, v7')
        A('v_add3_u32 v4, v4, v2, s39')
        A('v_and_b32 v5, 63, v0')
        A('v_lshlrev_b32 v5, 4, v5')
        A('s_lshl_b32 s39, s3, 12')
        A(f's_add_u32 s39, s39, {VOFF}')
        A('v_add_u32 v5, s39, v5')
        A(f's_mov_b32 s39, {SLOTSZ}')
        A(f'v_mov_b32 v6, {WOFF}')
        A('s_lshl_b32 s68, s4, 10')
        A(f's_add_u32 s68, s68, 0x{SY_OFF:x}')
        A('s_add_u32 s76, s58, s68')
        A('s_addc_u32 s77, s59, 0')
        A('s_mov_b32 s84, 0')
        A(f's_mov_b32 s85, {0 if NPB > 0 else 1}')
        A(f's_mov_b32 s86, {n0-1-dk}')
        A('s_cmp_eq_u32 s3, 0')
        A('s_cselect_b32 s86, s86, 0x7fff')
        A('s_mov_b32 s82, 4')
        A('v_mov_b32 v7, -1')
        A('ds_write_b32 v6, v7')
        A(f'ds_write_b32 v6, v7 offset:{SLOTSZ}')
        if dk == 2:
            self.set_V()
            A('s_mov_b32 s7, s87')
        A('s_add_u32 s87, s87, 4')
        A('s_add_u32 s38, s38, 4')
        self.set_K()
        if dk == 1:
            self.set_V()
            A('s_mov_b32 s7, s87')
        A(f's_waitcnt vmcnt({10*dk})')
        self.stamp()
        self.deq_K(*KA)
        self.issue_K(*KA)
        self.issue_V(*VB)
        A('v_mov_b32 v7, s87')
        A('s_waitcnt lgkmcnt(0)')
        A('ds_write_b32 v6, v7')
        self.ptoggle()
        A('s_waitcnt lgkmcnt(0)')
        self.barrier(pre=True)
        self.lab('L_ploop')
        for par, Kb, Vb in ((1, KB if dk == 2 else KA, VA), (0, KA, VB)):
            A('s_mov_b32 s6, s7')
            if dk == 2:
                A('s_mov_b32 s7, s87')
            A('s_cmp_lt_u32 s6, 0x100')
            A(f's_cbranch_scc1 L_plast{par}')
            A('s_add_u32 s84, s84, 1')
            A(f's_waitcnt vmcnt({30 if dk == 2 else 10})')
            Lst, Lgo, Lpoll, Lhave = self.newlab('st'), self.newlab('go'), self.newlab('pl'), self.newlab('hv')
            A(f's_cmp_lt_u32 s84, {n0-dk}')
            A(f's_cbranch_scc1 {Lst}')
            A('s_mov_b32 s87, 0xffff')
            A('s_cmp_lg_u32 s3, 0')
            A(f's_cbranch_scc1 {Lgo}')
            A('s_mov_b32 s87, 0')
            if NPB > 0:
                Lw = self.newlab('tw')
                A('s_cmp_lg_u32 s85, 0')
                A(f's_cbranch_scc1 {Lw}')
                A('s_waitcnt lgkmcnt(0)')
                A('s_mov_b32 s85, 1')
                A(f's_cmp_ge_u32 s80, {NPB}')
                A(f's_cbranch_scc1 {Lw}')
                A('s_mov_b32 s85, 0')
                A(f's_sub_u32 s81, {NPB}, s80')
                A('s_min_u32 s81, s81, s82')
                A('s_lshl_b32 s81, s81, 8')
                A(f's_add_u32 s87, s80, {16*n0}')
                A('s_or_b32 s87, s87, s81')
                A(f's_cmp_lt_u32 s80, {max(0, NPB - self.TH)}')
                A('s_cselect_b32 s82, 4, 2')
                self.lab(Lw)
            self.wwrite()
            A(f's_branch {Lgo}')
            self.lab(Lst)
            A('s_add_u32 s87, s87, 4')
            A('s_cmp_lg_u32 s3, 0')
            A(f's_cbranch_scc1 {Lgo}')
            self.wwrite()
            self.lab(Lgo)
            self.deq_K(*Kb)
            A('s_cmp_lg_u32 s87, 0xffff')
            A(f's_cbranch_scc1 {Lhave}')
            self.lab(Lpoll)
            A('ds_read_b32 v7, v6')
            A('s_waitcnt lgkmcnt(0)')
            A('v_readfirstlane_b32 s80, v7')
            A('s_lshr_b32 s81, s80, 16')
            A('s_cmp_lg_u32 s81, s84')
            A(f's_cbranch_scc1 {Lpoll}')
            A('s_and_b32 s87, s80, 0xffff')
            self.lab(Lhave)
            self.blk('s87')
            self.set_K()
            if dk == 1:
                self.set_V()
                A('s_mov_b32 s7, s87')
            self.issue_K(*Kb)
            if dk == 2:
                self.blk('s7')
                self.set_V()
                A('s_waitcnt vmcnt(30)')
            self.deq_V(*Vb)
            self.issue_V(*Vb)
            self.ptoggle()
            A('s_waitcnt lgkmcnt(0)')
            if NPB > 0:
                Ld = self.newlab('dr')
                A('s_cmp_lt_u32 s84, s86')
                A(f's_cbranch_scc1 {Ld}')
                A('s_cmp_lg_u32 s85, 0')
                A(f's_cbranch_scc1 {Ld}')
                A('s_mov_b32 s80, s82')
                A('s_atomic_add s80, s[76:77], 0 glc')
                self.lab(Ld)
            self.barrier(pre=True)
        A('s_branch L_ploop')
        for par, Vb in ((1, VA), (0, VB)):
            self.lab(f'L_plast{par}')
            A('s_waitcnt vmcnt(20)')
            self.deq_V(*Vb)
            if par == 1:
                A('s_branch L_ptail')
        self.lab('L_ptail')
        A('s_waitcnt lgkmcnt(0)')
        self.barrier(pre=True)
        self.stamp_out(191, 0)
        A('s_endpgm')

    O, Q, F, S, P = 64, 128, 160, 224, 16
    def kreads(self):
        F = self.F
        for n in range(16):
            T, s = n >> 3, n & 7
            self.A(f'ds_read_b128 v[{F+4*n}:{F+4*n+3}], v1 offset:{T*32*KROW + 32*s}')
    def softmax_ops(self):
        S, P = self.S, self.P
        ops = []
        a = ops.append
        a(f'v_max3_f32 v6, v{S}, v{S+1}, v{S+2}')
        for k in range(3, 15, 2):
            a(f'v_max3_f32 v6, v6, v{S+k}, v{S+k+1}')
        a(f'v_max_f32 v6, v6, v{S+15}')
        a('#T1')
        for k in range(16, 32, 2):
            a(f'v_max3_f32 v6, v6, v{S+k}, v{S+k+1}')
        a('v_mov_b32 v7, v6')
        a('s_nop 1')
        a('v_permlane32_swap_b32 v6, v7')
        a('v_max3_f32 v6, v6, v7, v3')
        a('v_sub_f32 v7, v3, v6')
        a('v_mul_f32 v7, s20, v7')
        a('v_exp_f32 v5, v7')
        a('v_mov_b32 v3, v6')
        a('v_mul_f32 v6, s20, v6')
        a('v_mul_f32 v4, v4, v5')
        for g in range(4):
            b = S + 8*g
            for r in range(8):
                a(f'v_fma_f32 v{b+r}, v{b+r}, s20, -v6')
            for r in range(8):
                a(f'v_exp_f32 v{b+r}, v{b+r}')
            if g == 0:
                a(f'v_add_f32 v7, v{b}, v{b+1}')
                a(f'v_add_f32 v8, v{b+2}, v{b+3}')
                rr = range(4, 8, 2)
            else:
                rr = range(0, 8, 2)
            for r in rr:
                a(f'v_add_f32 v7, v7, v{b+r}')
                a(f'v_add_f32 v8, v8, v{b+r+1}')
            a(f'#P{g}')
            for k in range(4):
                a(f'v_cvt_pk_bf16_f32 v{P+4*g+k}, v{b+2*k}, v{b+2*k+1}')
        a('v_add_f32 v7, v7, v8')
        a('v_add_f32 v4, v4, v7')
        return ops
    def mask_half(self):
        A = self.A
        L = self.newlab('mk')
        A('s_cmp_ge_u32 s28, 0x400')
        A(f's_cbranch_scc1 {L}')
        for r in range(16, 32):
            A(f'v_mov_b32 v{self.S+r}, v13')
        self.lab(L)
    def qk_mfma(self, n):
        Q, F, S = self.Q, self.F, self.S
        T, s = n >> 3, n & 7
        c = '0' if s == 0 else f'v[{S+16*T}:{S+16*T+15}]'
        return f'v_mfma_f32_32x32x16_bf16 v[{S+16*T}:{S+16*T+15}], v[{F+4*n}:{F+4*n+3}], v[{Q+4*s}:{Q+4*s+3}], {c}'
    def pv_mfma(self, n):
        O, F, P = self.O, self.F, self.P
        ks, j = n >> 2, n & 3
        return f'v_mfma_f32_32x32x16_bf16 v[{O+16*j}:{O+16*j+15}], v[{F+4*n}:{F+4*n+3}], v[{P+4*ks}:{P+4*ks+3}], v[{O+16*j}:{O+16*j+15}]'
    def vread(self, n):
        F = self.F
        ks, j = n >> 2, n & 3
        return f'ds_read_b128 v[{F+4*n}:{F+4*n+3}], v2 offset:{VOFF + ks*4096 + j*1024}'
    def phase_begin(self):
        self.A('ds_read_b32 v14, v10')
        self.A('v_add_u32 v10, s39, v10')
    def phase_end(self):
        A = self.A
        A('s_waitcnt lgkmcnt(0)')
        if self.dk == 2:
            A('s_mov_b32 s28, s27')
            A('v_readfirstlane_b32 s27, v14')
            A('s_sub_u32 s39, 0, s39')
            A('s_and_b32 s27, s27, 0xffff')
        else:
            A('v_readfirstlane_b32 s28, v14')
            A('s_sub_u32 s39, 0, s39')
            A('s_and_b32 s28, s28, 0xffff')
        L = self.newlab('el')
        A('s_cmp_eq_u32 s30, 3')
        A(f's_cbranch_scc1 {L}')
        A('s_call_b64 s[88:89], L_elect')
        self.lab(L)
    def step_full(self):
        A = self.A
        O = self.O
        self.phase_begin()
        self.kreads()
        for n in range(16):
            A('s_waitcnt lgkmcnt(14)')
            A(self.qk_mfma(n))
            A(self.vread(n))
            for r in range(4*n, 4*n+4):
                A(f'v_mul_f32 v{O+r}, v5, v{O+r}')
        A('v_add_u32 v1, s39, v1')
        ops = self.softmax_ops()
        def w(t):
            if t.startswith('#'): return 0
            if t.startswith('v_exp'): return 2
            return 1
        per = sum(w(t) for t in ops) / 16.0
        idx, acc, since_qk = 0, 0.0, 6
        for n in range(16):
            A(f's_waitcnt lgkmcnt({min(14, 15-n)})'); since_qk += 1
            A(self.pv_mfma(n)); since_qk += 1
            if n == 15:
                A('v_add_u32 v2, s39, v2')
            target = per * (n + 1)
            while idx < len(ops) and (acc < target or n == 15):
                t = ops[idx]
                if t == '#T1':
                    if since_qk < 12:
                        A(f's_nop {12 - since_qk - 1}')
                        since_qk = 12
                    self.mask_half()
                    idx += 1
                    continue
                if t.startswith('#P'):
                    if n < 4*int(t[2:]) + 3:
                        break
                    idx += 1
                    continue
                A(t); since_qk += 1
                acc += w(t)
                idx += 1
        assert idx == len(ops)
        self.phase_end()
    def step_first(self):
        A = self.A
        self.phase_begin()
        self.kreads()
        for n in range(16):
            A(f's_waitcnt lgkmcnt({min(14, 15-n)})')
            A(self.qk_mfma(n))
        A('v_add_u32 v1, s39, v1')
        A('v_add_u32 v2, s39, v2')
        cnt = 2
        for t in self.softmax_ops():
            if t == '#T1':
                if cnt < 12:
                    A(f's_nop {12 - cnt - 1}')
                continue
            if t.startswith('#'): continue
            A(t); cnt += 1
        self.phase_end()
    def step_last(self):
        A = self.A
        O = self.O
        for n in range(16):
            A(self.vread(n))
        for r in range(32):
            A(f'v_mul_f32 v{O+r}, v5, v{O+r}')
        for n in range(16):
            A(f's_waitcnt lgkmcnt({min(14, 15-n)})')
            A(self.pv_mfma(n))
            if n < 2:
                for r in range(32 + 16*n, 48 + 16*n):
                    A(f'v_mul_f32 v{O+r}, v5, v{O+r}')

    def elect_sub(self):
        A = self.A
        dl = self.n0 - 2 - self.dk
        done = 2 if self.sent else 3
        self.lab('L_elect')
        A('s_add_u32 s31, s31, 1')
        if self.sent:
            A('s_cmp_eq_u32 s30, 2')
            A('s_cbranch_scc1 L_el_hs')
        A('s_cmp_eq_u32 s30, 0')
        A('s_cbranch_scc1 L_el_nold')
        A('s_waitcnt vmcnt(0)')
        A('v_readfirstlane_b32 s80, v32')
        A('s_bitcmp1_b32 s80, 8')
        A(f's_cselect_b32 s30, {done}, 0')
        A('s_cbranch_scc1 L_el_ret')
        self.lab('L_el_nold')
        A(f's_cmp_ge_u32 s31, {dl}')
        A('s_cbranch_scc1 L_el_vote')
        A('s_cmp_lt_u32 s31, s29')
        A('s_cbranch_scc1 L_el_ret')
        A('v_mov_b32 v33, 0')
        A('global_load_dword v32, v33, s[76:77] sc1')
        A('s_mov_b32 s30, 1')
        A('s_branch L_el_ret')
        self.lab('L_el_vote')
        A('s_mov_b32 s80, 1')
        self.lab('L_el_try')
        A('s_atomic_add s80, s[76:77], 0 glc')
        A('s_waitcnt lgkmcnt(0)')
        A('s_cmp_eq_u32 s80, 0')
        A('s_cbranch_scc1 L_el_init')
        A('s_bitcmp1_b32 s80, 8')
        A('s_mov_b32 s80, 0')
        A('s_cbranch_scc0 L_el_try')
        A(f's_mov_b32 s30, {done}')
        A('s_branch L_el_ret')
        self.lab('L_el_init')
        for r in range(32, 36):
            A(f'v_mov_b32 v{r}, 0')
        A('buffer_store_dwordx4 v[32:35], v9, s[64:67], 0 offen sc1')
        A('s_waitcnt vmcnt(0)')
        A('s_movk_i32 s80, 0x100')
        A('s_atomic_add s80, s[76:77], 0')
        A(f's_mov_b32 s30, {done}')
        if self.sent:
            A('s_branch L_el_ret')
            self.lab('L_el_hs')
            A(f's_cmp_le_u32 s31, {dl}')
            A('s_cbranch_scc1 L_el_ret')
            A('s_mov_b32 s80, s26')
            A('s_atomic_add s80, s[78:79], 0 glc')
            A('s_waitcnt lgkmcnt(0)')
            A('s_add_u32 s80, s80, s26')
            A('s_mov_b32 s26, 0')
            A('s_bfe_u32 s80, s80, 0x30008')
            A('s_cmp_eq_u32 s80, 4')
            A('s_cselect_b32 s30, 3, 2')
        self.lab('L_el_ret')
        A('s_setpc_b64 s[88:89]')

    def pack_quarter(self, a, T):
        O = self.O
        for b in range(4):
            r = 4*a + b
            self.A(f'v_cvt_pk_bf16_f32 v{T+2*b}, v{O+r}, v{O+16+r}')
            self.A(f'v_cvt_pk_bf16_f32 v{T+2*b+1}, v{O+32+r}, v{O+48+r}')
        if self.sent:
            for p in range(8):
                self.A(f'v_min_u32 v{T+p}, -2, v{T+p}')
    def pub_quarter(self, a):
        st = self.o['stflags']
        T = self.Q + 8*a
        self.pack_quarter(a, T)
        vo = 9 if a < 2 else 14
        off = (a & 1) * 2048
        self.A(f'buffer_store_dwordx4 v[{T}:{T+3}], v{vo}, s[12:15], s21 offen offset:{off} {st}')
        self.A(f'buffer_store_dwordx4 v[{T+4}:{T+7}], v{vo}, s[12:15], s21 offen offset:{off+1024} {st}')
    def acc_piece(self, src, w, first):
        A = self.A
        for p in range(8):
            A(f'v_lshlrev_b32 v6, 16, v{src+p}')
            A(f'v_and_b32 v7, 0xffff0000, v{src+p}')
            op = 'v_mul_f32' if first else 'v_fmac_f32'
            A(f'{op} v{48+2*p}, v{w}, v6')
            A(f'{op} v{48+2*p+1}, v{w}, v7')
    def store_quarter(self, sa):
        A = self.A
        for p in range(8):
            A(f'v_cvt_pk_bf16_f32 v{32+p}, v{48+2*p}, v{48+2*p+1}')
        A(f's_lshl_b32 s80, {sa}, 6')
        A('s_add_u32 s80, s80, s23')
        of = self.o.get('oflags', '')
        A(f'buffer_store_dwordx4 v[32:35], v28, s[8:11], s80 offen {of}')
        A(f'buffer_store_dwordx4 v[36:39], v28, s[8:11], s80 offen offset:16 {of}')
    def load_pieces(self):
        F = self.F
        for k in range(3):
            self.A(f'buffer_load_dwordx2 v[{16+2*k}:{17+2*k}], v15, s[16:19], s{73+k} offen sc1')
        for k in range(3):
            self.A(f'buffer_load_dwordx4 v[{F+8*k}:{F+8*k+3}], v9, s[12:15], s{70+k} offen sc1')
            self.A(f'buffer_load_dwordx4 v[{F+8*k+4}:{F+8*k+7}], v9, s[12:15], s{70+k} offen offset:1024 sc1')
    def weights(self, mregs, lregs):
        A = self.A
        A(f'v_max3_f32 v6, v{mregs[0]}, v{mregs[1]}, v{mregs[2]}')
        A(f'v_max_f32 v6, v6, v{mregs[3]}')
        for k in range(4):
            A(f'v_sub_f32 v{24+k}, v{mregs[k]}, v6')
        for k in range(4):
            A(f'v_mul_f32 v{24+k}, s20, v{24+k}')
        for k in range(4):
            A(f'v_exp_f32 v{24+k}, v{24+k}')
        A('s_nop 0')
        A(f'v_mul_f32 v6, v24, v{lregs[0]}')
        for k in range(1, 4):
            A(f'v_fmac_f32 v6, v{24+k}, v{lregs[k]}')
        A('v_rcp_f32 v6, v6')
        A('s_nop 0')
        for k in range(4):
            A(f'v_mul_f32 v{24+k}, v{24+k}, v6')

    def consumer(self):
        A = self.A
        O, Q, F, S, P = self.O, self.Q, self.F, self.S, self.P
        st = self.o['stflags']
        A('v_and_b32 v6, 31, v0')
        A('v_bfe_u32 v7, v0, 5, 1')
        A('v_lshlrev_b32 v8, 8, v6')
        A('v_lshl_add_u32 v8, v7, 4, v8')
        A('s_lshl_b32 s23, s3, 13')
        A('s_lshl_b32 s22, s4, 15')
        A('s_mov_b32 s10, 0x8000')
        A('s_mov_b32 s11, 0x20000')
        A('s_waitcnt lgkmcnt(0)')
        self.stamp_init(11)
        A('s_add_u32 s8, s40, s22')
        A('s_addc_u32 s9, s41, 0')
        for s in range(8):
            A(f'buffer_load_dwordx4 v[{Q+4*s}:{Q+4*s+3}], v8, s[8:11], s23 offen offset:{32*s} {self.o["qflags"]}')
        A('s_lshl_b32 s76, s4, 2')
        A('s_add_u32 s76, s56, s76')
        A('s_addc_u32 s77, s57, 0')
        A(f's_mov_b32 s20, 0x{f32bits(CEXP):08x}')
        A(f'v_mul_u32_u24 v1, {KROW}, v6')
        A('v_lshl_add_u32 v1, v7, 4, v1')
        A('v_and_b32 v2, 63, v0')
        A('v_lshlrev_b32 v2, 4, v2')
        A('v_mov_b32 v9, v2')
        A('v_lshrrev_b32 v15, 1, v9')
        A('v_lshlrev_b32 v28, 8, v6')
        A('v_lshl_add_u32 v28, v7, 5, v28')
        A('v_mov_b32 v12, v28')
        A(f'v_mov_b32 v10, {WOFF}')
        A(f'v_mov_b32 v3, 0x{NEG:x}')
        A(f'v_mov_b32 v13, 0x{NEG:x}')
        A('v_mov_b32 v4, 0')
        A('s_lshl_b32 s21, s4, 17')
        A('s_add_u32 s12, s58, s21')
        A('s_addc_u32 s13, s59, 0')
        A('s_mov_b32 s14, 0x20000')
        A('s_mov_b32 s15, 0x20000')
        A('s_lshl_b32 s21, s4, 13')
        A(f's_add_u32 s21, s21, 0x{ML_OFF:x}')
        A('s_add_u32 s16, s58, s21')
        A('s_addc_u32 s17, s59, 0')
        A('s_mov_b32 s18, 0x2000')
        A('s_mov_b32 s19, 0x20000')
        A('s_lshl_b32 s21, s4, 10')
        A(f's_add_u32 s21, s21, 0x{SY_OFF:x}')
        A('s_add_u32 s64, s58, s21')
        A('s_addc_u32 s65, s59, 0')
        A('s_mov_b32 s66, 0x400')
        A('s_mov_b32 s67, 0x20000')
        A('s_lshl_b32 s21, s3, 7')
        A('s_add_u32 s21, s21, 128')
        A('s_add_u32 s78, s64, s21')
        A('s_addc_u32 s79, s65, 0')
        A('s_lshl_b32 s21, s5, 15')
        A('s_add_u32 s21, s21, s23')
        A('s_lshl_b32 s24, s3, 9')
        A('s_lshl_b32 s25, s5, 11')
        A('s_add_u32 s25, s25, s24')
        A('s_lshl_b32 s82, s5, 11')
        A('s_add_u32 s82, s82, s23')
        for k in range(3):
            A(f's_add_u32 s68, s5, {k+1}')
            A('s_and_b32 s68, s68, 3')
            A(f's_lshl_b32 s{70+k}, s68, 15')
            A(f's_add_u32 s{70+k}, s{70+k}, s82')
            A(f's_lshl_b32 s{73+k}, s68, 11')
            A(f's_add_u32 s{73+k}, s{73+k}, s24')
        if self.sent:
            for r in range(32, 36):
                A(f'v_mov_b32 v{r}, -1')
            A('v_add_u32 v14, 0x1000, v9')
            A(f'buffer_store_dwordx2 v[32:33], v15, s[16:19], s25 offen {st}')
            for c in range(8):
                Ls = self.newlab('cl')
                if c % 2 == 0:
                    A(f's_cmp_eq_u32 s5, {c >> 1}')
                    A(f's_cbranch_scc1 {Ls}')
                    A(f'buffer_store_dwordx4 v[32:35], v{9 if c < 4 else 14}, s[12:15], s21 offen offset:{1024*(c & 3)} {st}')
                    A(f'buffer_store_dwordx4 v[32:35], v{9 if c < 4 else 14}, s[12:15], s21 offen offset:{1024*((c+1) & 3)} {st}')
                    self.lab(Ls)
            A('s_movk_i32 s26, 0x100')
        for r in range(64):
            A(f'v_mov_b32 v{O+r}, 0')
        A(f's_mov_b32 s39, {SLOTSZ}')
        A('s_movk_i32 s27, 0x400')
        A('s_cmp_eq_u32 s3, 0')
        A(f's_cselect_b32 s30, 0, {2 if self.sent else 3}')
        A('s_mov_b32 s31, 0')
        A('s_add_u32 s29, s5, 1')
        Le = self.newlab('e0')
        A('s_or_b32 s80, s5, s3')
        A('s_cmp_lg_u32 s80, 0')
        A(f's_cbranch_scc1 {Le}')
        A('s_call_b64 s[88:89], L_el_vote')
        self.lab(Le)
        A('s_waitcnt vmcnt(0)')
        A('s_add_u32 s8, s54, s22')
        A('s_addc_u32 s9, s55, 0')
        self.barrier(pre=True)
        self.step_first()
        self.lab('L_cloop')
        self.barrier(pre=True)
        A('s_cmp_lt_u32 s28, 0x100')
        A('s_cbranch_scc1 L_clast')
        self.step_full()
        A('s_branch L_cloop')
        self.elect_sub()
        self.lab('L_clast')
        self.stamp()
        self.step_last()
        A('v_mov_b32 v7, v4')
        A('v_mov_b32 v28, v12')
        A('v_mov_b32 v12, v3')
        A('v_permlane32_swap_b32 v4, v7')
        A('v_add_f32 v13, v4, v7')
        A(f'buffer_store_dwordx2 v[12:13], v15, s[16:19], s25 offen {st}')
        A('v_add_u32 v14, 0x1000, v9')
        A('s_nop 4')
        for a in range(4):
            Ls = self.newlab('pq')
            A(f's_cmp_eq_u32 s5, {a}')
            A(f's_cbranch_scc1 {Ls}')
            self.pub_quarter(a)
            self.lab(Ls)
        A(f's_mov_b32 s84, {int(self.o["spin"])}')
        A('s_mov_b32 s83, 1')
        if self.sent:
            A('s_cmp_lg_u32 s30, 3')
            A('s_cbranch_scc1 L_cslow')
            self.load_pieces()
        for a in range(4):
            Ls = self.newlab('oq')
            A(f's_cmp_lg_u32 s5, {a}')
            A(f's_cbranch_scc1 {Ls}')
            for b in range(4):
                for j in range(4):
                    A(f'v_mov_b32 v{48+4*b+j}, v{O+16*j+4*a+b}')
            self.lab(Ls)
        if self.sent:
            A('s_waitcnt vmcnt(9)')
            self.stamp()
            A('s_atomic_add s83, s[78:79], 0 glc')
            self.lab('L_cspoll')
            A('s_waitcnt vmcnt(0)')
            A(f'v_max3_u32 v6, v17, v19, v21')
            for p in range(0, 24, 2):
                A(f'v_max3_u32 v6, v6, v{F+p}, v{F+p+1}')
            A('v_cmp_eq_u32 vcc, -1, v6')
            A('s_nop 1')
            A('s_cmp_eq_u64 vcc, 0')
            A('s_cbranch_scc1 L_cfinish')
            A('s_cmp_eq_u32 s84, 0')
            A('s_cbranch_scc1 L_cgiveup0')
            A('s_sub_u32 s84, s84, 1')
            self.load_pieces()
            A('s_branch L_cspoll')
            self.lab('L_cgiveup0')
            A('s_waitcnt lgkmcnt(0)')
            A('s_branch L_cgiveup')
            self.lab('L_cslow')
            for a in range(4):
                Ls = self.newlab('oq')
                A(f's_cmp_lg_u32 s5, {a}')
                A(f's_cbranch_scc1 {Ls}')
                for b in range(4):
                    for j in range(4):
                        A(f'v_mov_b32 v{48+4*b+j}, v{O+16*j+4*a+b}')
                self.lab(Ls)
        A('s_waitcnt vmcnt(0)')
        self.stamp()
        A('s_atomic_add s83, s[78:79], 0 glc')
        A('s_waitcnt lgkmcnt(0)')
        A('s_and_b32 s80, s83, 7')
        A('s_add_u32 s80, s80, 1')
        self.lab('L_cpoll')
        A('s_cmp_eq_u32 s80, 4')
        A('s_cbranch_scc1 L_cready')
        A('s_cmp_eq_u32 s84, 0')
        A('s_cbranch_scc1 L_cgiveup')
        A('s_sub_u32 s84, s84, 1')
        A('s_mov_b32 s80, 0')
        A('s_atomic_add s80, s[78:79], 0 glc')
        A('s_waitcnt lgkmcnt(0)')
        A('s_and_b32 s80, s80, 7')
        A('s_branch L_cpoll')
        self.lab('L_cready')
        self.load_pieces()
        A('s_waitcnt vmcnt(0)')
        self.lab('L_cfinish')
        self.stamp()
        self.weights((16, 18, 20, 12), (17, 19, 21, 13))
        for e in range(16):
            A(f'v_mul_f32 v{48+e}, v27, v{48+e}')
        for k in range(3):
            self.acc_piece(F+8*k, 24+k, False)
        self.store_quarter('s5')
        A('s_waitcnt lgkmcnt(0)')
        A('s_and_b32 s80, s83, 7')
        A('s_cmp_lg_u32 s80, 3')
        A('s_cbranch_scc1 L_cend')
        A('s_bfe_u32 s85, s83, 0x40004')
        A('s_branch L_cmem')
        self.lab('L_cgiveup')
        for a in range(4):
            Ls = self.newlab('gq')
            A(f's_cmp_lg_u32 s5, {a}')
            A(f's_cbranch_scc1 {Ls}')
            self.pub_quarter(a)
            self.lab(Ls)
        A('s_waitcnt vmcnt(0)')
        A('s_lshl_b32 s80, 16, s5')
        A('s_atomic_or s80, s[78:79], 0 glc')
        A('s_waitcnt lgkmcnt(0)')
        A('s_and_b32 s80, s80, 7')
        A('s_cmp_lg_u32 s80, 4')
        A('s_cbranch_scc1 L_cend')
        A('s_lshl_b32 s85, 1, s5')
        self.lab('L_cmem')
        A('s_cmp_eq_u32 s85, 0')
        A('s_cbranch_scc1 L_cend')
        A('s_ff1_i32_b32 s86, s85')
        A('s_lshl_b32 s80, 1, s86')
        A('s_andn2_b32 s85, s85, s80')
        A('s_and_b32 s86, s86, 3')
        A('s_lshl_b32 s80, s86, 11')
        A('s_add_u32 s80, s80, s23')
        A('s_mov_b32 s81, s24')
        for k in range(4):
            A(f'buffer_load_dwordx2 v[{16+2*k}:{17+2*k}], v15, s[16:19], s81 offen sc1')
            A(f'buffer_load_dwordx4 v[{F+8*k}:{F+8*k+3}], v9, s[12:15], s80 offen sc1')
            A(f'buffer_load_dwordx4 v[{F+8*k+4}:{F+8*k+7}], v9, s[12:15], s80 offen offset:1024 sc1')
            A('s_add_u32 s80, s80, 0x8000')
            A('s_add_u32 s81, s81, 0x800')
        A('s_waitcnt vmcnt(0)')
        self.weights((16, 18, 20, 22), (17, 19, 21, 23))
        for k in range(4):
            self.acc_piece(F+8*k, 24+k, k == 0)
        self.store_quarter('s86')
        A('s_branch L_cmem')
        self.lab('L_cend')
        self.stamp()
        self.stamp_out(14, 4)
        A('s_endpgm')

    def build(self):
        hdr = open('cdna_kernels/' + NAME + '.s.ref').read().split('\n')
        for line in hdr:
            if line.startswith('; Override'): break
            self.raw(line)
        self.raw(f'; @launch grid=(256,1,1) block=(512,1,1) lds={LDS_BYTES}')
        self.raw('.amdgcn_target "amdgcn-amd-amdhsa--gfx950"')
        self.raw('.text')
        A = self.A
        self.raw(f'.globl {NAME}_kernel')
        self.raw('.p2align 8')
        self.raw(f'.type {NAME}_kernel,@function')
        self.lab(f'{NAME}_kernel')
        if self.o.get('stamp'): A('s_memrealtime s[90:91]')
        A('s_cmp_ge_u32 s2, 256')
        A('s_cbranch_scc1 L_exit')
        A('s_load_dwordx16 s[40:55], s[0:1], 0')
        A('s_load_dwordx4 s[56:59], s[0:1], 64')
        A('v_lshrrev_b32 v1, 6, v0')
        if int(self.o.get('map', 0)) == 0:
            A('s_lshr_b32 s4, s2, 2')
            A('v_readfirstlane_b32 s3, v1')
            A('s_and_b32 s5, s2, 3')
            A('s_nop 2')
        elif int(self.o.get('map', 0)) == 2:
            A('s_lshr_b32 s4, s2, 3')
            A('v_readfirstlane_b32 s3, v1')
            A('s_and_b32 s5, s2, 1')
            A('s_lshr_b32 s6, s4, s5')
            A('s_and_b32 s6, s6, 1')
            A('s_add_u32 s7, s6, 1')
            A('s_lshr_b32 s7, s2, s7')
            A('s_sub_u32 s6, 2, s6')
            A('s_lshr_b32 s6, s2, s6')
            A('s_and_b32 s6, s6, 1')
            A('s_lshr_b32 s60, s4, 2')
            A('s_and_b32 s60, s60, s5')
            A('s_xor_b32 s7, s7, s60')
            A('s_and_b32 s7, s7, 1')
            A('s_lshl_b32 s4, s4, 1')
            A('s_or_b32 s4, s4, s7')
            A('s_lshl_b32 s6, s6, 1')
            A('s_or_b32 s5, s5, s6')
        else:
            A('s_lshr_b32 s4, s2, 3')
            A('v_readfirstlane_b32 s3, v1')
            A('s_lshl_b32 s4, s4, 1')
            A('s_bfe_u32 s5, s2, 0x10001')
            A('s_or_b32 s4, s4, s5')
            A('s_bfe_u32 s5, s2, 0x10002')
            A('s_lshl_b32 s5, s5, 1')
            A('s_and_b32 s6, s2, 1')
            A('s_or_b32 s5, s5, s6')
        A('s_cmp_lt_u32 s3, 4')
        A('s_cbranch_scc1 L_consumer')
        A('s_sub_u32 s3, s3, 4')
        if self.o.get('pprio'):
            A(f's_setprio {self.o["pprio"]}')
        self.producer()
        self.lab('L_consumer')
        self.consumer()
        self.lab('L_exit')
        A('s_endpgm')
        r = self.raw
        r('.section .rodata,"a"')
        r('.p2align 6')
        r(f'.amdhsa_kernel {NAME}_kernel')
        r('  .amdhsa_next_free_vgpr 256')
        r('  .amdhsa_next_free_sgpr 102')
        r('  .amdhsa_accum_offset 256')
        r('  .amdhsa_group_segment_fixed_size 0')
        r('  .amdhsa_kernarg_size 80')
        r('  .amdhsa_user_sgpr_count 2')
        r('  .amdhsa_user_sgpr_kernarg_segment_ptr 1')
        r('  .amdhsa_system_sgpr_workgroup_id_x 1')
        r('  .amdhsa_float_denorm_mode_32 3')
        r('.end_amdhsa_kernel')
        return '\n'.join(self.L) + '\n'

DEFAULTS = dict(ldflags='nt', stflags='sc1', qflags='', n0='11', spin='300', dk='1', th='0', sent='0')
if __name__ == '__main__':
    opts = dict(DEFAULTS)
    out = sys.argv[1] if len(sys.argv) > 1 else 'cdna_kernels/' + NAME + '.s'
    for kv in sys.argv[2:]:
        k, v = kv.split('=', 1)
        opts[k] = v
    open(out, 'w').write(Gen(opts).build())
```
